```python
import torch

def _softmax(x, axis=-1):
    return torch.softmax(x, dim=axis)
def _gelu(x):
    return torch.nn.functional.gelu(x, approximate="tanh")
def _silu(x):
    return torch.nn.functional.silu(x)
def _sigmoid(x):
    return torch.sigmoid(x)
def _layernorm(x, axis=-1, eps=1e-5):
    m = x.mean(dim=axis, keepdim=True)
    v = x.var(dim=axis, keepdim=True, unbiased=False)
    return (x - m) / torch.sqrt(v + eps)
def _scatter_add(tgt, idx, src, axis=0):
    return tgt.clone().index_add_(axis, idx, src)
def _segment_sum(src, seg, n):
    out = torch.zeros((n,) + src.shape[1:], dtype=src.dtype)
    return out.index_add_(0, seg, src)
def _pad(x, pw):
    flat = tuple(v for pair in reversed(pw) for v in pair)
    return torch.nn.functional.pad(x, flat)

kernel_name = 'standalone__low_rank_proj_linformer__decode'

def setup_inputs():

    _w = (lambda a: (lambda t: t.to(torch.bfloat16) if t.is_floating_point() else t)(torch.as_tensor(a)))
    B, H, Sq, Skv, Dh, R = 2, 16, 1, 8192, 256, 16
    return {
        "q": _w((lambda *s: torch.randn(*s, dtype=torch.bfloat16) * 0.8)(B, H, Sq, Dh)),
        "k": _w((lambda *s: torch.randn(*s, dtype=torch.bfloat16) * 0.8)(B, H, Skv, Dh)),
        "v": _w((lambda *s: torch.randn(*s, dtype=torch.bfloat16) * 0.05)(B, H, Skv, Dh)),
        "e_proj": _w((lambda *s: torch.randn(*s, dtype=torch.bfloat16) * 0.8)(R, Skv) * (Skv ** -0.5)),
        "f_proj": _w((lambda *s: torch.randn(*s, dtype=torch.bfloat16) * 0.05)(R, Skv) * (Skv ** -0.5)),
    }

def reference(q, k, v, e_proj, f_proj):
    B, H, Sq, Dh = q.shape
    kp = torch.einsum("rn,bhnd->bhrd", e_proj, k)
    vp = torch.einsum("rn,bhnd->bhrd", f_proj, v)
    scores = torch.einsum("bhqd,bhrd->bhqr", q, kp) * (Dh ** -0.5)
    p = _softmax(scores, axis=-1)
    o = torch.einsum("bhqr,bhrd->bhqd", p, vp)
    return o
```

```python
import sys

NAME = "standalone__low_rank_proj_linformer__decode_kernel"

HEADER = """; Kernarg layout for this problem (64 bytes, ptrs only, base s[0:1]):
"""

class G:
    def __init__(self):
        self.lines = []
        self.vm = []
    def e(self, s):
        self.lines.append("    " + s)
    def c(self, s):
        self.lines.append("    ; " + s)
    def label(self, s):
        self.lines.append(s + ":")
    def vmem(self, s, tag):
        self.e(s)
        self.vm.append(tag)
    def wait(self, tags):
        last = -1
        for i, t in enumerate(self.vm):
            if t in tags:
                last = i
        if last < 0:
            return
        n = len(self.vm) - 1 - last
        assert n <= 63, n
        self.e(f"s_waitcnt vmcnt({n})")
        self.vm = self.vm[last + 1:]
    def text(self):
        return "\n".join(self.lines) + "\n"

def vr(a, n):
    return f"v[{a}:{a+n-1}]"

def gen(half=True, depth=4, nt=True, interleave=True, stamps=False, nocompute=False,
        uP=3, cP=8, uQ=10, cQ=14, efnt=False, kpol=None, vpol=None, dbgstamps=False, echo=None):
    g = G()
    e = g.e
    SK, SV, SE, SF, SQ, SO, SD, SW = 4, 8, 12, 16, 20, 24, 28, 32
    sLO, sHI, sKV, sEF = 36, 37, 38, 39
    sT0, sT1, sT2, sT3 = 56, 57, 58, 59
    sWSL = 60
    sHEAD = 61
    sCNT = 62
    vKV, vEF, vL, vT = 1, 2, 3, 4
    vQ = 8
    vB = 16
    vX = 24
    vACC = 32
    vD = 96
    vA = 224
    SLOT = 2048
    LDS_O = 0
    LDS_S = 8192
    LDS_C = 8192 + 512
    LDS_SIZE = 8192 + 512 + 64
    NU = 16 if half else 8
    per = 8 if half else 16
    nslots = 4 if half else 2
    assert depth <= nslots
    ntf = " nt" if nt else ""
    kpol = ntf if kpol is None else (" " + kpol if kpol else "")
    vpol = ntf if vpol is None else (" " + vpol if vpol else "")
    efntf = " nt" if efnt else ""

    if dbgstamps or echo:
        stamps = True
    def stamp(idx):
        if not stamps:
            return
        e(f"s_memrealtime s[{64+2*idx}:{65+2*idx}]")

    e(f"s_load_dwordx16 s[40:55], s[0:1], 0")
    e(f"s_cmp_ge_u32 s2, 256")
    e(f"s_cbranch_scc1 L_end")
    stamp(0)
    e(f"v_lshrrev_b32 v{vT}, 6, v0")
    e(f"v_and_b32 v{vL}, 63, v0")
    e(f"v_readfirstlane_b32 s3, v{vT}")
    e(f"v_and_b32 v{vT+1}, 15, v0              ; c")
    e(f"v_bfe_u32 v{vT+2}, v0, 4, 2            ; g")
    e(f"v_lshlrev_b32 v{vKV}, 4, v{vT+1}")
    e(f"v_lshl_add_u32 v{vKV}, v{vT+2}, 12, v{vKV}   ; g*4096 + c*16")
    e(f"v_lshlrev_b32 v{vEF}, 4, v{vT+2}")
    e(f"v_lshl_add_u32 v{vEF}, v{vT+1}, 14, v{vEF}   ; c*16384 + g*16")
    for s, sz in ((SK, 0x8000000), (SV, 0x8000000), (SE, 0x40000), (SF, 0x40000), (SQ, 0x4000), (SO, 0x4000), (SD, 256), (SW, 0x20000000)):
        e(f"s_mov_b32 s{s+2}, {hex(sz)}")
        e(f"s_mov_b32 s{s+3}, 0x20000")
    e(f"s_mov_b32 s{sLO}, 0x05040100")
    e(f"s_mov_b32 s{sHI}, 0x07060302")
    tstep = 8 if interleave else 1
    wsh = 0 if interleave else 2
    e(f"s_lshl_b32 s{sKV}, s2, 19")
    e(f"s_lshl_b32 s{sT0}, s3, {14+wsh}")
    e(f"s_add_u32 s{sKV}, s{sKV}, s{sT0}")
    e(f"s_and_b32 s{sEF}, s2, 7")
    e(f"s_lshl_b32 s{sEF}, s{sEF}, 11")
    e(f"s_lshl_b32 s{sT0}, s3, {6+wsh}")
    e(f"s_add_u32 s{sEF}, s{sEF}, s{sT0}")
    e(f"s_lshl_b32 s{sWSL}, s2, 11")
    e(f"s_lshr_b32 s{sHEAD}, s2, 3")
    sTO = 84
    for t in range(4):
        e(f"s_add_u32 s{sTO+t}, s{sKV}, {t*tstep*16384}")
    e(f"v_mov_b32 v{vX}, -1")
    e(f"v_mov_b32 v{vX+1}, -1")
    e(f"v_mov_b32 v{vX+2}, -1")
    e(f"v_mov_b32 v{vX+3}, -1")
    e(f"v_lshlrev_b32 v{vX+4}, 4, v{vL}       ; lane*16")
    e(f"v_lshlrev_b32 v{vX+5}, 4, v{vT+1}     ; c*16")
    e(f"s_lshl_b32 s{sT1}, s{sHEAD}, 9")
    e(f"s_waitcnt lgkmcnt(0)")
    e(f"s_mov_b64 s[{SK}:{SK+1}], s[42:43]")
    e(f"s_mov_b64 s[{SE}:{SE+1}], s[46:47]")

    def issue(u):
        if u >= NU:
            return
        if half:
            T, hs = u >> 1, [u & 1]
        else:
            T, hs = u, [0, 1]
        t = T & 3
        srd = SK if T < 4 else SV
        srdef = SE if T < 4 else SF
        if hs[0] == 0:
            g.vmem(f"buffer_load_dwordx4 {vr(vA+4*T,4)}, v{vEF}, s[{srdef}:{srdef+3}], s{sEF} offen offset:{t*tstep*64}{efntf}", f"L{u}")
        base = vD + (u % nslots) * per * 4
        for j in range(8):
            for hi, h in enumerate(hs):
                r = base + (hi * 8 + j) * 4
                g.vmem(f"buffer_load_dwordx4 {vr(r,4)}, v{vKV}, s[{srd}:{srd+3}], s{sTO+t} offen offset:{j*512+h*256}{kpol if T < 4 else vpol}", f"L{u}")

    def process(u):
        if half:
            T, hs = u >> 1, [u & 1]
        else:
            T, hs = u, [0, 1]
        base = vD + (u % nslots) * per * 4
        first = (T & 3) == 0
        jobs = [(hi, h, i) for hi, h in enumerate(hs) for i in range(8)]
        if nocompute:
            return
        def perm(k):
            hi, h, i = jobs[k]
            tb = vB + (k & 1) * 4
            m = i >> 1
            sel = sHI if (i & 1) else sLO
            for q in range(4):
                x0 = base + (hi * 8 + 2 * q) * 4 + m
                x1 = base + (hi * 8 + 2 * q + 1) * 4 + m
                e(f"v_perm_b32 v{tb+q}, v{x1}, v{x0}, s{sel}")
        def mfma(k):
            hi, h, i = jobs[k]
            tb = vB + (k & 1) * 4
            acc = vACC + (h * 8 + i) * 4
            cin = "0" if first else vr(acc, 4)
            e(f"v_mfma_f32_16x16x32_bf16 {vr(acc,4)}, {vr(vA+4*T,4)}, {vr(tb,4)}, {cin}")
        perm(0)
        for k in range(len(jobs)):
            if k + 1 < len(jobs):
                perm(k + 1)
            else:
                e("s_nop 1")
            mfma(k)

    issue(0)
    e(f"s_mov_b64 s[{SV}:{SV+1}], s[44:45]")
    e(f"s_mov_b64 s[{SF}:{SF+1}], s[48:49]")
    e(f"s_mov_b64 s[{SQ}:{SQ+1}], s[40:41]")
    e(f"s_mov_b64 s[{SO}:{SO+1}], s[50:51]")
    e(f"s_mov_b64 s[{SD}:{SD+1}], s[52:53]")
    e(f"s_mov_b64 s[{SW}:{SW+1}], s[54:55]")
    e(f"s_cmp_eq_u32 s3, 0")
    e(f"s_cselect_b32 s{sT0}, 0, 0x7f000000")
    e(f"v_or_b32 v{vX+6}, s{sT0}, v{vX+4}")
    g.vmem(f"buffer_store_dwordx4 {vr(vX,4)}, v{vX+6}, s[{SW}:{SW+3}], s{sWSL} offen sc1", "C")
    g.vmem(f"buffer_store_dwordx4 {vr(vX,4)}, v{vX+6}, s[{SW}:{SW+3}], s{sWSL} offen offset:1024 sc1", "C")
    for u in range(1, depth):
        issue(u)
    g.vmem(f"buffer_load_dwordx4 {vr(vQ,4)}, v{vX+5}, s[{SQ}:{SQ+3}], s{sT1} offen", "q")
    g.vmem(f"buffer_load_dwordx4 {vr(vQ+4,4)}, v{vX+5}, s[{SQ}:{SQ+3}], s{sT1} offen offset:256", "q")
    e(f"v_mov_b32 v{vT}, 0")
    e(f"v_mov_b32 v{vT+3}, {LDS_C}")
    e(f"ds_write_b32 v{vT+3}, v{vT}")
    e(f"s_waitcnt lgkmcnt(0)")
    e(f"s_barrier")

    lastK = NU // 2 - 1
    uA = 1
    for u in range(NU):
        need = {f"L{u}"}
        if u == uA:
            need.add("C")
        if u == cP:
            need.add("P")
        g.c(f"---- unit {u}")
        g.wait(need)
        if u == 0:
            stamp(1)
        if u == NU - 1:
            stamp(3)
        process(u)
        issue(u + depth)
        if u == uA:
            g.c("clear done -> count this WG in d_debug[head]")
            e(f"s_lshl_b32 s{sT0}, s{sHEAD}, 2")
            e(f"v_mov_b32 v{vT}, 1")
            e(f"s_mov_b64 exec, 1")
            g.vmem(f"buffer_atomic_add v{vT}, v{vX+6}, s[{SD}:{SD+3}], s{sT0} offen offset:128", "A")
            e(f"s_mov_b64 exec, -1")
        if u == uP:
            e(f"s_lshl_b32 s{sT0}, s{sHEAD}, 2")
            g.vmem(f"buffer_load_dword v{vX+6}, off, s[{SD}:{SD+3}], s{sT0} offset:128 sc1", "P")
        if u == cP:
            g.c("check that all 8 workgroups of this head have cleared their slots")
            e(f"s_mov_b32 s{sCNT}, 0")
            e(f"s_lshl_b32 s{sT0}, s{sHEAD}, 2")
            g.label("L_chkP")
            e(f"v_readfirstlane_b32 s{sT1}, v{vX+6}")
            e(f"s_cmp_ge_u32 s{sT1}, 8")
            e(f"s_cbranch_scc1 L_okP")
            e(f"buffer_load_dword v{vX+6}, off, s[{SD}:{SD+3}], s{sT0} offset:128 sc1")
            e(f"s_add_u32 s{sCNT}, s{sCNT}, 1")
            e(f"s_cmp_lt_u32 s{sCNT}, 0x100000")
            e(f"s_waitcnt vmcnt(0)")
            e(f"s_cbranch_scc1 L_chkP")
            g.label("L_okP")
        if u == lastK:
            stamp(2)
            g.c("partial scores of this wave")
            g.wait({"q"})
            e("s_nop 7")
            for hi in range(16):
                qr = vQ + (hi >> 1)
                if hi & 1:
                    e(f"v_and_b32 v{vT}, 0xffff0000, v{qr}")
                else:
                    e(f"v_lshlrev_b32 v{vT}, 16, v{qr}")
                for r in range(4):
                    if hi == 0:
                        e(f"v_mul_f32 v{vB+r}, v{vT}, v{vACC+hi*4+r}")
                    else:
                        e(f"v_fmac_f32 v{vB+r}, v{vT}, v{vACC+hi*4+r}")
            for sh in (8, 4, 2, 1):
                for r in range(4):
                    e(f"v_add_f32_dpp v{vB+r}, v{vB+r}, v{vB+r} row_ror:{sh} row_mask:0xf bank_mask:0xf")
            e(f"v_bfe_u32 v{vT}, v0, 4, 5            ; wave*4 + g")
            e(f"v_lshlrev_b32 v{vT}, 4, v{vT}")
            e(f"v_mov_b32 v{vT+1}, 1")
            e(f"v_mov_b32 v{vT+3}, {LDS_C}")
            e(f"s_mov_b32 exec_lo, 0x00010001")
            e(f"s_mov_b32 exec_hi, 0x00010001")
            e(f"ds_write_b128 v{vT}, {vr(vB,4)} offset:{LDS_S}")
            e(f"s_mov_b64 exec, 1")
            e(f"ds_add_rtn_u32 v{vT+2}, v{vT+3}, v{vT+1}")
            e(f"s_mov_b64 exec, -1")
            e(f"v_and_b32 v{vT}, 15, v0")
            e(f"v_lshlrev_b32 v{vT}, 2, v{vT}       ; r*4")
            e(f"s_waitcnt lgkmcnt(0)")
            e(f"v_readfirstlane_b32 s{sT0}, v{vT+2}")
            for w in range(8):
                e(f"ds_read_b32 v{vQ+w}, v{vT} offset:{LDS_S+w*64}")
            e(f"s_cmp_eq_u32 s{sT0}, 7")
            e(f"s_cselect_b32 s{sT0}, 0, 0x7f000000")
            e(f"v_or_b32 v{vT+1}, s{sT0}, v{vT}")
            e(f"s_waitcnt lgkmcnt(0)")
            e(f"v_add_f32 v{vQ}, v{vQ}, v{vQ+1}")
            e(f"v_add_f32 v{vQ+2}, v{vQ+2}, v{vQ+3}")
            e(f"v_add_f32 v{vQ+4}, v{vQ+4}, v{vQ+5}")
            e(f"v_add_f32 v{vQ+6}, v{vQ+6}, v{vQ+7}")
            e(f"v_add_f32 v{vQ}, v{vQ}, v{vQ+2}")
            e(f"v_add_f32 v{vQ+4}, v{vQ+4}, v{vQ+6}")
            e(f"v_add_f32 v{vQ}, v{vQ}, v{vQ+4}")
            e(f"v_min_u32 v{vQ}, -2, v{vQ}")
            e(f"s_mov_b64 exec, 0xffff")
            g.vmem(f"buffer_store_dword v{vQ}, v{vT+1}, s[{SW}:{SW+3}], s{sWSL} offen offset:1024 sc1", "S")
            e(f"s_mov_b64 exec, -1")
        if u == uQ:
            g.c("fetch the partial scores of the 8 workgroups of this head")
            e(f"v_and_b32 v{vT}, 7, v0")
            e(f"v_bfe_u32 v{vT+1}, v0, 4, 2")
            e(f"v_lshlrev_b32 v{vT}, 11, v{vT}")
            e(f"v_lshl_add_u32 v{vX+7}, v{vT+1}, 4, v{vT}    ; slice*2048 + g*16")
            e(f"s_lshl_b32 s{sT2}, s{sHEAD}, 14")
            g.vmem(f"buffer_load_dwordx4 {vr(vQ+4,4)}, v{vX+7}, s[{SW}:{SW+3}], s{sT2} offen offset:1024 sc1", "Q")
        if u == cQ:
            g.wait({"Q"})
            e(f"s_mov_b32 s{sCNT}, 0")
            g.label("L_chkQ")
            e(f"v_max3_u32 v{vT}, v{vQ+4}, v{vQ+5}, v{vQ+6}")
            e(f"v_max_u32 v{vT}, v{vT}, v{vQ+7}")
            e(f"v_cmp_eq_u32 vcc, -1, v{vT}")
            e(f"s_cbranch_vccz L_okQ")
            e(f"buffer_load_dwordx4 {vr(vQ+4,4)}, v{vX+7}, s[{SW}:{SW+3}], s{sT2} offen offset:1024 sc1")
            e(f"s_add_u32 s{sCNT}, s{sCNT}, 1")
            e(f"s_cmp_lt_u32 s{sCNT}, 0x100000")
            e(f"s_waitcnt vmcnt(0)")
            e(f"s_cbranch_scc1 L_chkQ")
            g.label("L_okQ")
            P = vQ + 4
            for sh in (4, 2, 1):
                for r in range(4):
                    e(f"v_add_f32_dpp v{P+r}, v{P+r}, v{P+r} row_ror:{sh} row_mask:0xf bank_mask:0xf")
            g.c("softmax over the 16 scores (4 regs x 4 lane groups)")
            e(f"v_max3_f32 v{vT}, v{P}, v{P+1}, v{P+2}")
            e(f"v_max_f32 v{vT}, v{vT}, v{P+3}")
            e(f"v_mov_b32 v{vT+1}, v{vT}")
            e(f"s_nop 1")
            e(f"v_permlane32_swap_b32 v{vT}, v{vT+1}")
            e(f"v_max_f32 v{vT}, v{vT}, v{vT+1}")
            e(f"v_mov_b32 v{vT+1}, v{vT}")
            e(f"s_nop 1")
            e(f"v_permlane16_swap_b32 v{vT}, v{vT+1}")
            e(f"v_max_f32 v{vT}, v{vT}, v{vT+1}")
            e(f"s_mov_b32 s{sT0}, 0x3db8aa3b          ; log2(e)/16")
            for r in range(4):
                e(f"v_sub_f32 v{P+r}, v{P+r}, v{vT}")
            for r in range(4):
                e(f"v_mul_f32 v{P+r}, s{sT0}, v{P+r}")
            for r in range(4):
                e(f"v_exp_f32 v{P+r}, v{P+r}")
            e(f"s_nop 0")
            e(f"v_add_f32 v{vT}, v{P}, v{P+1}")
            e(f"v_add_f32 v{vT+1}, v{P+2}, v{P+3}")
            e(f"v_add_f32 v{vT}, v{vT}, v{vT+1}")
            e(f"v_mov_b32 v{vT+1}, v{vT}")
            e(f"s_nop 1")
            e(f"v_permlane32_swap_b32 v{vT}, v{vT+1}")
            e(f"v_add_f32 v{vT}, v{vT}, v{vT+1}")
            e(f"v_mov_b32 v{vT+1}, v{vT}")
            e(f"s_nop 1")
            e(f"v_permlane16_swap_b32 v{vT}, v{vT+1}")
            e(f"v_add_f32 v{vT}, v{vT}, v{vT+1}")
            e(f"v_rcp_f32 v{vT}, v{vT}")
            e(f"s_nop 0")
            for r in range(4):
                e(f"v_mul_f32 v{P+r}, v{P+r}, v{vT}")

    P = vQ + 4
    g.c("---- epilogue")
    e("s_nop 7")
    t = vD
    for hi in range(16):
        a = vACC + hi * 4
        e(f"v_mul_f32 v{t+hi}, v{P}, v{a}")
        e(f"v_fmac_f32 v{t+hi}, v{P+1}, v{a+1}")
        e(f"v_fmac_f32 v{t+hi}, v{P+2}, v{a+2}")
        e(f"v_fmac_f32 v{t+hi}, v{P+3}, v{a+3}")
    e("s_nop 1")
    for m in range(8):
        e(f"v_permlane32_swap_b32 v{t+m}, v{t+m+8}")
    for m in range(8):
        e(f"v_add_f32 v{t+m}, v{t+m}, v{t+m+8}")
    e("s_nop 1")
    for m in range(4):
        e(f"v_permlane16_swap_b32 v{t+m}, v{t+m+4}")
    for m in range(4):
        e(f"v_add_f32 v{t+m}, v{t+m}, v{t+m+4}")
    e(f"v_lshlrev_b32 v{vT}, 4, v0")
    e(f"ds_write_b128 v{vT}, {vr(t,4)} offset:{LDS_O}")
    e(f"s_waitcnt lgkmcnt(0)")
    e(f"s_barrier")
    stamp(4)
    e(f"s_cmp_eq_u32 s3, 1")
    e(f"s_cbranch_scc1 L_final")
    e(f"s_cmp_eq_u32 s3, 0")
    e(f"s_cbranch_scc0 L_end")
    g.c("wave 0: sum the 8 waves and publish")
    for w in range(8):
        e(f"ds_read_b128 {vr(t+4*w,4)}, v{vX+4} offset:{LDS_O+w*1024}")
    e(f"v_bfe_u32 v{vT}, v0, 5, 1")
    e(f"v_bfe_u32 v{vT+1}, v0, 4, 1")
    e(f"v_and_b32 v{vT+2}, 15, v0")
    e(f"v_lshlrev_b32 v{vT}, 9, v{vT}")
    e(f"v_lshl_add_u32 v{vT}, v{vT+2}, 5, v{vT}")
    e(f"v_lshl_add_u32 v{vT}, v{vT+1}, 4, v{vT}")
    e(f"s_waitcnt lgkmcnt(0)")
    for st in (1, 2, 4):
        for w in range(0, 8, 2 * st):
            for r in range(4):
                e(f"v_add_f32 v{t+4*w+r}, v{t+4*w+r}, v{t+4*(w+st)+r}")
    for r in range(4):
        e(f"v_min_u32 v{t+r}, -2, v{t+r}")
    e(f"buffer_store_dwordx4 {vr(t,4)}, v{vT}, s[{SW}:{SW+3}], s{sWSL} offen sc1")
    if stamps and not dbgstamps and not echo:
        emit_stamps(g, SW, 0)
    e(f"s_endpgm")
    g.label("L_final")
    g.c("wave 1: gather the 8 partials of 32 output columns, sum, store")
    e(f"v_bfe_u32 v{vT}, v0, 3, 3")
    e(f"v_and_b32 v{vT+1}, 7, v0")
    e(f"v_lshlrev_b32 v{vT}, 11, v{vT}")
    e(f"v_lshl_add_u32 v{vT}, v{vT+1}, 4, v{vT}")
    e(f"s_lshl_b32 s{sT2}, s{sHEAD}, 14")
    e(f"s_and_b32 s{sT0}, s2, 7")
    e(f"s_lshl_b32 s{sT0}, s{sT0}, 7")
    e(f"s_add_u32 s{sT2}, s{sT2}, s{sT0}")
    e(f"s_mov_b32 s{sCNT}, 0")
    e(f"v_bfe_u32 v{vT+2}, v0, 4, 2")
    e(f"v_lshlrev_b32 v{vT+2}, 1, v{vT+2}")
    e(f"v_lshl_add_u32 v{vT+2}, v{vT+1}, 3, v{vT+2}")
    e(f"s_lshl_b32 s{sT3}, s2, 6")
    g.label("L_poll")
    e(f"buffer_load_dwordx4 {vr(t,4)}, v{vT}, s[{SW}:{SW+3}], s{sT2} offen sc1")
    e(f"s_add_u32 s{sCNT}, s{sCNT}, 1")
    e(f"s_cmp_ge_u32 s{sCNT}, 0x100000")
    e(f"s_waitcnt vmcnt(0)")
    e(f"v_max3_u32 v{t+4}, v{t}, v{t+1}, v{t+2}")
    e(f"v_max_u32 v{t+4}, v{t+4}, v{t+3}")
    e(f"v_cmp_eq_u32 vcc, -1, v{t+4}")
    e(f"s_cbranch_scc1 L_got")
    e(f"s_cbranch_vccnz L_poll")
    g.label("L_got")
    e(f"v_permlane32_swap_b32 v{t}, v{t+2}")
    e(f"v_permlane32_swap_b32 v{t+1}, v{t+3}")
    e(f"v_add_f32 v{t}, v{t}, v{t+2}")
    e(f"v_add_f32 v{t+1}, v{t+1}, v{t+3}")
    e(f"s_nop 1")
    e(f"v_permlane16_swap_b32 v{t}, v{t+1}")
    e(f"v_add_f32 v{t}, v{t}, v{t+1}")
    e(f"s_nop 1")
    e(f"v_add_f32_dpp v{t}, v{t}, v{t} row_ror:8 row_mask:0xf bank_mask:0xf")
    e(f"v_cvt_pk_bf16_f32 v{t}, v{t}, v{t}")
    e(f"s_mov_b32 exec_lo, 0x00ff00ff")
    e(f"s_mov_b32 exec_hi, 0x00ff00ff")
    e(f"buffer_store_short v{t}, v{vT+2}, s[{SO}:{SO+3}], s{sT3} offen")
    if stamps:
        e(f"s_mov_b64 exec, -1")
        e(f"s_waitcnt vmcnt(0)")
        e(f"s_memrealtime s[74:75]")
        if echo:
            a, b, mult = echo
            e("s_waitcnt lgkmcnt(0)")
            e(f"s_sub_u32 s56, s{64+2*b}, s{64+2*a}")
            e(f"s_mul_i32 s56, s56, {mult}")
            g.label("L_echo")
            e("s_memrealtime s[76:77]")
            e("s_waitcnt lgkmcnt(0)")
            e("s_sub_u32 s57, s76, s74")
            e("s_cmp_lt_u32 s57, s56")
            e("s_cbranch_scc1 L_echo")
        elif dbgstamps:
            e("s_waitcnt lgkmcnt(0)")
            e("s_mov_b64 exec, 1")
            for i in range(6):
                e(f"v_mov_b32 v200, s{64+2*i}")
                e(f"v_not_b32 v201, v200")
                e(f"buffer_atomic_umax v200, off, s[{SD}:{SD+3}], 0 offset:{i*8}")
                e(f"buffer_atomic_umax v201, off, s[{SD}:{SD+3}], 0 offset:{i*8+4}")
                e("s_waitcnt vmcnt(0)")
        else:
            emit_stamps(g, SW, 1)
    g.label("L_end")
    e("s_endpgm")

    out = HEADER
    out += f"; @launch grid=(256,1,1) block=(512,1,1) lds={LDS_SIZE}\n"
    out += f""".amdgcn_target "amdgcn-amd-amdhsa--gfx950"
.text
.globl {NAME}
.p2align 8
.type {NAME},@function
{NAME}:
"""
    out += g.text()
    out += f""".section .rodata,"a"
.p2align 6
.amdhsa_kernel {NAME}
  .amdhsa_next_free_vgpr 256
  .amdhsa_next_free_sgpr 96
  .amdhsa_accum_offset 256
  .amdhsa_group_segment_fixed_size 0
  .amdhsa_kernarg_size 64
  .amdhsa_user_sgpr_count 2
  .amdhsa_user_sgpr_kernarg_segment_ptr 1
  .amdhsa_system_sgpr_workgroup_id_x 1
  .amdhsa_float_denorm_mode_32 3
.end_amdhsa_kernel
"""
    return out

def emit_stamps(g, SW, which):
    e = g.e
    e("s_waitcnt lgkmcnt(0)")
    for i in range(6):
        e(f"v_mov_b32 v{200+i}, s{64+2*i}")
    e(f"v_mov_b32 v206, s62")
    e(f"v_mov_b32 v207, 0")
    e(f"s_lshl_b32 s56, s2, 6")
    e(f"s_add_u32 s56, s56, {(1<<20) + which*32}")
    e(f"s_mov_b64 exec, 1")
    e(f"buffer_store_dwordx4 v[200:203], off, s[{SW}:{SW+3}], s56")
    e(f"buffer_store_dwordx4 v[204:207], off, s[{SW}:{SW+3}], s56 offset:16")

if __name__ == "__main__":
    import ast
    out = sys.argv[1]
    kw = {}
    for a in sys.argv[2:]:
        k, v = a.split("=")
        kw[k] = ast.literal_eval(v)
    open(out, "w").write(gen(**kw))
```

```python
import sys
from gen import G, vr, HEADER, NAME

def gen(F=4, pol="nt", stamps=False, nBar=15, nBar2=60, nC=18, nA=26, nq=30, nP=40, cP=48, nS=80, nQ=100, cQ=108,
        dE=(4, 6, 8, 10), dF=(22, 32, 42, 52), sync=True, oddF=None, prio=None, dwin=True, noef=False):
    g = G()
    e = g.e
    SK, SV, SE, SF, SQ, SO, SD, SW = 4, 8, 12, 16, 20, 24, 28, 32
    sLO, sHI, sKV, sOFF = 36, 37, 38, 39
    sT0, sT1, sT2, sT3 = 56, 57, 58, 59
    sWSL, sHEAD, sCNT = 60, 61, 62
    vKV = 1
    vT = 2
    vQ = 8
    vX = 16
    vA = 24
    vACC = 56
    vB = 120
    vR = 184
    NR = 8
    NV = 216
    RS = 2064
    LDS_E = 0
    LDS_F = 16 * RS
    LDS_O = 32 * RS
    LDS_S = LDS_O + 8192
    LDS_C = LDS_S + 512
    LDS_SIZE = LDS_C + 64
    N = 128
    polf = " " + pol if pol else ""

    def stamp(idx):
        if stamps:
            e(f"s_memrealtime s[{64+2*idx}:{65+2*idx}]")

    e(f"s_load_dwordx16 s[40:55], s[0:1], 0")
    e(f"s_cmp_ge_u32 s2, 256")
    e(f"s_cbranch_scc1 L_end")
    stamp(0)
    e(f"v_and_b32 v{vT}, 15, v0                ; c")
    e(f"v_lshrrev_b32 v{vT+1}, 4, v0           ; wave*4 + g")
    e(f"v_lshlrev_b32 v{vX+5}, 4, v{vT}        ; c*16")
    e(f"v_lshl_add_u32 v{vKV}, v{vT+1}, 10, v{vX+5}   ; wave*4096 + g*1024 + c*16")
    e(f"s_mov_b32 s{SK+2}, 0x8000000")
    e(f"s_mov_b32 s{SK+3}, 0x20000")
    e(f"s_lshl_b32 s{sKV}, s2, 19")
    e(f"s_waitcnt lgkmcnt(0)")
    e(f"s_mov_b64 s[{SK}:{SK+1}], s[42:43]")

    cur = [None]
    def issue(n):
        if n >= N:
            return
        ph, blk, k = n >> 6, (n >> 2) & 15, n & 3
        h, j0 = k >> 1, k & 1
        srd = SV if ph else SK
        if blk == 0:
            so = sKV
        else:
            if cur[0] != blk:
                e(f"s_add_u32 s{sOFF}, s{sKV}, {blk << 15}")
                cur[0] = blk
            so = sOFF
        r = vR + (n % NR) * 4
        g.vmem(f"buffer_load_dwordx4 {vr(r,4)}, v{vKV}, s[{srd}:{srd+3}], s{so} offen offset:{j0*512+h*256}{polf}", f"L{n}")

    def consume(n, tail=False):
        if not (n & 1):
            return
        ph, T, q, h = n >> 6, (n >> 4) & 3, (n >> 2) & 3, (n >> 1) & 1
        x0 = vR + ((n - 1) % NR) * 4
        x1 = vR + (n % NR) * 4
        def perm(i):
            sel = sHI if (i & 1) else sLO
            e(f"v_perm_b32 v{vB+(h*8+i)*4+q}, v{x1+(i>>1)}, v{x0+(i>>1)}, s{sel}")
        def mfma(i):
            acc = vACC + (h * 8 + i) * 4
            cin = "0" if T == 0 else vr(acc, 4)
            a = vA + (ph * 4 + T) * 4
            e(f"v_mfma_f32_16x16x32_bf16 {vr(acc,4)}, {vr(a,4)}, {vr(vB+(h*8+i)*4,4)}, {cin}")
        if q != 3:
            for i in range(8):
                perm(i)
            return
        perm(0); perm(1); perm(2)
        for i in range(8):
            mfma(i)
            if i + 3 < 8:
                perm(i + 3)

    P = vQ + 4
    def epi_half(h):
        t = vB + 32 * (1 - h) * 0
        for hi in range(h * 8, h * 8 + 8):
            a = vACC + hi * 4
            e(f"v_mul_f32 v{vR+hi}, v{P}, v{a}")
            e(f"v_fmac_f32 v{vR+hi}, v{P+1}, v{a+1}")
            e(f"v_fmac_f32 v{vR+hi}, v{P+2}, v{a+2}")
            e(f"v_fmac_f32 v{vR+hi}, v{P+3}, v{a+3}")

    sDG0, sDG1, sDL = 76, 77, 78
    def dma(k):
        srd, base = (SE, LDS_E) if k < 4 else (SF, LDS_F)
        row, half = (k >> 1) & 1, k & 1
        e(f"s_add_u32 m0, s{sDL}, {base + row*RS}")
        e(f"s_nop 0")
        g.vmem(f"buffer_load_dwordx4 v{vX+4}, s[{srd}:{srd+3}], s{sDG1 if row else sDG0} offen offset:{half*1024} lds", f"D{k}")

    for n in range(F):
        issue(n)
    e(f"s_mov_b64 s[{SE}:{SE+1}], s[46:47]")
    e(f"s_mov_b64 s[{SF}:{SF+1}], s[48:49]")
    e(f"s_mov_b64 s[{SV}:{SV+1}], s[44:45]")
    e(f"s_mov_b64 s[{SQ}:{SQ+1}], s[40:41]")
    e(f"s_mov_b64 s[{SO}:{SO+1}], s[50:51]")
    e(f"s_mov_b64 s[{SD}:{SD+1}], s[52:53]")
    e(f"s_mov_b64 s[{SW}:{SW+1}], s[54:55]")
    for sr, sz in ((SV, 0x8000000), (SE, 0x40000), (SF, 0x40000), (SQ, 0x4000), (SO, 0x4000), (SD, 256), (SW, 0x20000000)):
        e(f"s_mov_b32 s{sr+2}, {hex(sz)}")
        e(f"s_mov_b32 s{sr+3}, 0x20000")
    e(f"v_lshrrev_b32 v{vT+2}, 6, v0")
    e(f"v_and_b32 v{vX+4}, 63, v0")
    e(f"v_readfirstlane_b32 s3, v{vT+2}")
    e(f"v_lshlrev_b32 v{vX+4}, 4, v{vX+4}      ; lane*16")
    e(f"s_mov_b32 s{sLO}, 0x05040100")
    e(f"s_mov_b32 s{sHI}, 0x07060302")
    e(f"s_lshl_b32 s{sWSL}, s2, 11")
    e(f"s_lshr_b32 s{sHEAD}, s2, 3")
    e(f"s_and_b32 s{sDG0}, s2, 7")
    e(f"s_lshl_b32 s{sDG0}, s{sDG0}, 11")
    e(f"s_lshl_b32 s{sT1}, s3, 15")
    e(f"s_add_u32 s{sDG0}, s{sDG0}, s{sT1}")
    e(f"s_add_u32 s{sDG1}, s{sDG0}, 16384")
    e(f"s_mul_i32 s{sDL}, s3, {2*RS}")
    if prio == "byw":
        e(f"s_cmp_ge_u32 s3, 4")
        e(f"s_cbranch_scc0 L_prio")
        e(f"s_setprio 1")
        g.label("L_prio")
    e(f"s_cmp_eq_u32 s3, 0")
    e(f"s_cselect_b32 s{sT0}, 0, 0x7f000000")
    e(f"v_mov_b32 v{vX}, -1")
    e(f"v_mov_b32 v{vX+1}, -1")
    e(f"v_mov_b32 v{vX+2}, -1")
    e(f"v_mov_b32 v{vX+3}, -1")
    e(f"v_or_b32 v{vX+6}, s{sT0}, v{vX+4}")
    e(f"v_mov_b32 v{vT}, 0")
    e(f"v_mov_b32 v{vT+3}, {LDS_C}")
    e(f"ds_write_b32 v{vT+3}, v{vT}")

    dpos = {} if noef else {p: k for k, p in enumerate(list(dE) + list(dF))}
    for n in range(F, N + F):
        need = {f"L{n-F}"}
        if n == nBar:
            need |= {"D0", "D1", "D2", "D3"}
        if n == nBar2:
            need |= {"D4", "D5", "D6", "D7"}
        if n == nA:
            need.add("C")
        if n == cP:
            need.add("P")
        if n >= N and not ((n - F) & 1):
            continue
        g.wait(need)
        if dwin:
            big = [t for t in g.vm if t[0] in "LD"]
            if len(big) >= F:
                g.wait({big[len(big) - F]})
        if n == F:
            stamp(1)
        issue(n)
        if n in dpos:
            dma(dpos[n])
        consume(n - F)
        if n == nC and sync:
            g.c("clear this WG's hand-off slots (wave 0 only; other waves go out of range)")
            g.vmem(f"buffer_store_dwordx4 {vr(vX,4)}, v{vX+6}, s[{SW}:{SW+3}], s{sWSL} offen sc1", "C")
            e(f"s_mov_b64 exec, 0xff")
            g.vmem(f"buffer_store_dwordx4 {vr(vX,4)}, v{vX+6}, s[{SW}:{SW+3}], s{sWSL} offen offset:1024 sc1", "C")
            e(f"s_mov_b64 exec, -1")
        if n == nBar or n == nBar2:
            ph = int(n == nBar2)
            g.c("staged: fetch this wave's A fragments")
            e(f"s_waitcnt lgkmcnt(0)")
            e(f"s_barrier")
            e(f"v_and_b32 v{vT}, 15, v0")
            e(f"v_lshrrev_b32 v{vT+1}, 4, v0")
            e(f"v_mul_u32_u24 v{vT}, {RS}, v{vT}")
            e(f"v_lshl_add_u32 v{vT}, v{vT+1}, 2, v{vT}")
            for T in range(4):
                for q in range(4):
                    e(f"ds_read_b32 v{vA+(ph*4+T)*4+q}, v{vT} offset:{(LDS_F if ph else LDS_E) + T*512 + q*128}")
        if n == nBar + 1 or n == nBar2 + 1:
            e(f"s_waitcnt lgkmcnt(0)")
        if n == nA and sync:
            g.c("clear done -> count this WG in d_debug[head]")
            e(f"s_cmp_eq_u32 s3, 0")
            e(f"s_cbranch_scc0 L_noA")
            e(f"s_lshl_b32 s{sT0}, s{sHEAD}, 2")
            e(f"s_mov_b32 s{sT1}, 1")
            e(f"s_atomic_add s{sT1}, s[52:53], s{sT0}")
            g.label("L_noA")
        if n == nq:
            e(f"s_lshl_b32 s{sT1}, s{sHEAD}, 9")
            g.vmem(f"buffer_load_dwordx4 {vr(vQ,4)}, v{vX+5}, s[{SQ}:{SQ+3}], s{sT1} offen", "q")
            g.vmem(f"buffer_load_dwordx4 {vr(vQ+4,4)}, v{vX+5}, s[{SQ}:{SQ+3}], s{sT1} offen offset:256", "q")
        if n == nP and sync:
            e(f"s_lshl_b32 s{sT0}, s{sHEAD}, 2")
            g.vmem(f"buffer_load_dword v{vX+7}, off, s[{SD}:{SD+3}], s{sT0} sc1", "P")
        if n == cP and sync:
            g.c("check that all 8 workgroups of this head have cleared their slots")
            e(f"s_mov_b32 s{sCNT}, 0")
            e(f"s_lshl_b32 s{sT0}, s{sHEAD}, 2")
            g.label("L_chkP")
            e(f"v_readfirstlane_b32 s{sT1}, v{vX+7}")
            e(f"s_cmp_ge_u32 s{sT1}, 8")
            e(f"s_cbranch_scc1 L_okP")
            e(f"buffer_load_dword v{vX+7}, off, s[{SD}:{SD+3}], s{sT0} sc1")
            e(f"s_add_u32 s{sCNT}, s{sCNT}, 1")
            e(f"s_cmp_lt_u32 s{sCNT}, 0x100000")
            e(f"s_waitcnt vmcnt(0)")
            e(f"s_cbranch_scc1 L_chkP")
            g.label("L_okP")
        if n - F == 64:
            stamp(2)
            g.c("partial scores of this wave")
            g.wait({"q"})
            e("s_nop 4")
            S4 = vT + 2
            for hi in range(16):
                qr = vQ + (hi >> 1)
                if hi & 1:
                    e(f"v_and_b32 v{vT}, 0xffff0000, v{qr}")
                else:
                    e(f"v_lshlrev_b32 v{vT}, 16, v{qr}")
                for r in range(4):
                    if hi == 0:
                        e(f"v_mul_f32 v{S4+r}, v{vT}, v{vACC+hi*4+r}")
                    else:
                        e(f"v_fmac_f32 v{S4+r}, v{vT}, v{vACC+hi*4+r}")
            for sh in (8, 4, 2, 1):
                for r in range(4):
                    e(f"v_add_f32_dpp v{S4+r}, v{S4+r}, v{S4+r} row_ror:{sh} row_mask:0xf bank_mask:0xf")
            e(f"v_lshrrev_b32 v{vT}, 4, v0           ; wave*4 + g")
            e(f"v_lshlrev_b32 v{vT}, 4, v{vT}")
            e(f"v_add_u32 v{vT}, {LDS_S}, v{vT}")
            e(f"v_mov_b32 v{vQ}, 1")
            e(f"v_mov_b32 v{vQ+1}, {LDS_C}")
            e(f"s_mov_b32 exec_lo, 0x00010001")
            e(f"s_mov_b32 exec_hi, 0x00010001")
            e(f"ds_write_b128 v{vT}, {vr(S4,4)}")
            e(f"s_mov_b64 exec, 1")
            e(f"ds_add_u32 v{vQ+1}, v{vQ}")
            e(f"s_mov_b64 exec, -1")
        if n == nS:
            g.c("wave 0 publishes the workgroup's partial scores (other waves: store out of range)")
            e(f"v_and_b32 v{vT}, 15, v0")
            e(f"v_lshlrev_b32 v{vT}, 2, v{vT}       ; r*4")
            e(f"v_add_u32 v{vT+2}, {LDS_S}, v{vT}")
            e(f"v_mov_b32 v{vT+3}, {LDS_C}")
            e(f"s_cmp_eq_u32 s3, 0")
            e(f"s_cbranch_scc0 L_noS")
            e(f"s_mov_b32 s{sCNT}, 0")
            g.label("L_waitS")
            e(f"ds_read_b32 v{vT+4}, v{vT+3}")
            e(f"s_add_u32 s{sCNT}, s{sCNT}, 1")
            e(f"s_waitcnt lgkmcnt(0)")
            e(f"v_readfirstlane_b32 s{sT0}, v{vT+4}")
            e(f"s_cmp_ge_u32 s{sCNT}, 0x1000000")
            e(f"s_cbranch_scc1 L_gotS")
            e(f"s_cmp_lt_u32 s{sT0}, 8")
            e(f"s_cbranch_scc1 L_waitS")
            g.label("L_gotS")
            for w in range(8):
                e(f"ds_read_b32 v{vQ+w}, v{vT+2} offset:{w*64}")
            e(f"s_waitcnt lgkmcnt(0)")
            e(f"v_add_f32 v{vQ}, v{vQ}, v{vQ+1}")
            e(f"v_add_f32 v{vQ+2}, v{vQ+2}, v{vQ+3}")
            e(f"v_add_f32 v{vQ+4}, v{vQ+4}, v{vQ+5}")
            e(f"v_add_f32 v{vQ+6}, v{vQ+6}, v{vQ+7}")
            e(f"v_add_f32 v{vQ}, v{vQ}, v{vQ+2}")
            e(f"v_add_f32 v{vQ+4}, v{vQ+4}, v{vQ+6}")
            e(f"v_add_f32 v{vQ}, v{vQ}, v{vQ+4}")
            e(f"v_min_u32 v{vQ}, -2, v{vQ}")
            g.label("L_noS")
            e(f"v_and_b32 v{vT+1}, 0x7f000000, v{vX+6}")
            e(f"v_or_b32 v{vT+1}, v{vT+1}, v{vT}")
            e(f"s_mov_b64 exec, 0xffff")
            g.vmem(f"buffer_store_dword v{vQ}, v{vT+1}, s[{SW}:{SW+3}], s{sWSL} offen offset:1024 sc1", "S")
            e(f"s_mov_b64 exec, -1")
        if n == nQ:
            g.c("fetch the partial scores of the 8 workgroups of this head")
            e(f"v_and_b32 v{vT}, 7, v0")
            e(f"v_bfe_u32 v{vT+1}, v0, 4, 2")
            e(f"v_lshlrev_b32 v{vT}, 11, v{vT}")
            e(f"v_lshl_add_u32 v{vX+7}, v{vT+1}, 4, v{vT}    ; slice*2048 + g*16")
            e(f"s_lshl_b32 s{sT2}, s{sHEAD}, 14")
            g.vmem(f"buffer_load_dwordx4 {vr(P,4)}, v{vX+7}, s[{SW}:{SW+3}], s{sT2} offen offset:1024 sc1", "Q")
        if n == cQ:
            g.wait({"Q"})
            e(f"s_mov_b32 s{sCNT}, 0")
            g.label("L_chkQ")
            e(f"v_max3_u32 v{vT}, v{P}, v{P+1}, v{P+2}")
            e(f"v_max_u32 v{vT}, v{vT}, v{P+3}")
            e(f"v_cmp_eq_u32 vcc, -1, v{vT}")
            e(f"s_cbranch_vccz L_okQ")
            e(f"buffer_load_dwordx4 {vr(P,4)}, v{vX+7}, s[{SW}:{SW+3}], s{sT2} offen offset:1024 sc1")
            e(f"s_add_u32 s{sCNT}, s{sCNT}, 1")
            e(f"s_cmp_lt_u32 s{sCNT}, 0x100000")
            e(f"s_waitcnt vmcnt(0)")
            e(f"s_cbranch_scc1 L_chkQ")
            g.label("L_okQ")
            for sh in (4, 2, 1):
                for r in range(4):
                    e(f"v_add_f32_dpp v{P+r}, v{P+r}, v{P+r} row_ror:{sh} row_mask:0xf bank_mask:0xf")
            g.c("softmax over the 16 scores (4 regs x 4 lane groups)")
            e(f"v_max3_f32 v{vT}, v{P}, v{P+1}, v{P+2}")
            e(f"v_max_f32 v{vT}, v{vT}, v{P+3}")
            e(f"v_mov_b32 v{vT+1}, v{vT}")
            e(f"s_nop 1")
            e(f"v_permlane32_swap_b32 v{vT}, v{vT+1}")
            e(f"v_max_f32 v{vT}, v{vT}, v{vT+1}")
            e(f"v_mov_b32 v{vT+1}, v{vT}")
            e(f"s_nop 1")
            e(f"v_permlane16_swap_b32 v{vT}, v{vT+1}")
            e(f"v_max_f32 v{vT}, v{vT}, v{vT+1}")
            e(f"s_mov_b32 s{sT0}, 0x3db8aa3b          ; log2(e)/16")
            for r in range(4):
                e(f"v_sub_f32 v{P+r}, v{P+r}, v{vT}")
            for r in range(4):
                e(f"v_mul_f32 v{P+r}, s{sT0}, v{P+r}")
            for r in range(4):
                e(f"v_exp_f32 v{P+r}, v{P+r}")
            e(f"s_nop 0")
            e(f"v_add_f32 v{vT}, v{P}, v{P+1}")
            e(f"v_add_f32 v{vT+1}, v{P+2}, v{P+3}")
            e(f"v_add_f32 v{vT}, v{vT}, v{vT+1}")
            e(f"v_mov_b32 v{vT+1}, v{vT}")
            e(f"s_nop 1")
            e(f"v_permlane32_swap_b32 v{vT}, v{vT+1}")
            e(f"v_add_f32 v{vT}, v{vT}, v{vT+1}")
            e(f"v_mov_b32 v{vT+1}, v{vT}")
            e(f"s_nop 1")
            e(f"v_permlane16_swap_b32 v{vT}, v{vT+1}")
            e(f"v_add_f32 v{vT}, v{vT}, v{vT+1}")
            e(f"v_rcp_f32 v{vT}, v{vT}")
            e(f"s_nop 0")
            for r in range(4):
                e(f"v_mul_f32 v{P+r}, v{P+r}, v{vT}")
        if n - F == N - 3:
            g.c("first half of the output reduction while the last pair is in flight")
            e("s_nop 7")
            epi_half(0)

    g.c("---- epilogue")
    t = vR
    e("s_nop 0")
    epi_half(1)
    e("s_nop 1")
    for m in range(8):
        e(f"v_permlane32_swap_b32 v{t+m}, v{t+m+8}")
    for m in range(8):
        e(f"v_add_f32 v{t+m}, v{t+m}, v{t+m+8}")
    e("s_nop 1")
    for m in range(4):
        e(f"v_permlane16_swap_b32 v{t+m}, v{t+m+4}")
    e(f"v_lshlrev_b32 v{vT}, 4, v0")
    for m in range(4):
        e(f"v_add_f32 v{t+m}, v{t+m}, v{t+m+4}")
    e(f"v_add_u32 v{vT}, {LDS_O}, v{vT}")
    e(f"ds_write_b128 v{vT}, {vr(t,4)}")
    e(f"s_waitcnt lgkmcnt(0)")
    e(f"s_barrier")
    e(f"s_cmp_eq_u32 s3, 1")
    e(f"s_cbranch_scc1 L_final")
    e(f"s_cmp_eq_u32 s3, 0")
    e(f"s_cbranch_scc0 L_exit")
    g.c("wave 0: sum the 8 waves and publish")
    t = vB
    for w in range(8):
        e(f"ds_read_b128 {vr(t+4*w,4)}, v{vT} offset:{w*1024}")
    e(f"v_bfe_u32 v{vT+3}, v0, 5, 1")
    e(f"v_bfe_u32 v{vT+1}, v0, 4, 1")
    e(f"v_and_b32 v{vT+2}, 15, v0")
    e(f"v_lshlrev_b32 v{vT+3}, 9, v{vT+3}")
    e(f"v_lshl_add_u32 v{vT+3}, v{vT+2}, 5, v{vT+3}")
    e(f"v_lshl_add_u32 v{vT+3}, v{vT+1}, 4, v{vT+3}")
    e(f"s_waitcnt lgkmcnt(0)")
    for st in (1, 2, 4):
        for w in range(0, 8, 2 * st):
            for r in range(4):
                e(f"v_add_f32 v{t+4*w+r}, v{t+4*w+r}, v{t+4*(w+st)+r}")
    for r in range(4):
        e(f"v_min_u32 v{t+r}, -2, v{t+r}")
    e(f"buffer_store_dwordx4 {vr(t,4)}, v{vT+3}, s[{SW}:{SW+3}], s{sWSL} offen sc1")
    e(f"s_branch L_exit")
    g.label("L_final")
    g.c("wave 1: gather the 8 partials of 32 output columns, sum, store")
    e(f"v_bfe_u32 v{vT}, v0, 3, 3")
    e(f"v_and_b32 v{vT+1}, 7, v0")
    e(f"v_lshlrev_b32 v{vT}, 11, v{vT}")
    e(f"v_lshl_add_u32 v{vT}, v{vT+1}, 4, v{vT}")
    e(f"s_lshl_b32 s{sT2}, s{sHEAD}, 14")
    e(f"s_and_b32 s{sT0}, s2, 7")
    e(f"s_lshl_b32 s{sT0}, s{sT0}, 7")
    e(f"s_add_u32 s{sT2}, s{sT2}, s{sT0}")
    e(f"s_mov_b32 s{sCNT}, 0")
    e(f"v_bfe_u32 v{vT+2}, v0, 4, 2")
    e(f"v_lshlrev_b32 v{vT+2}, 1, v{vT+2}")
    e(f"v_lshl_add_u32 v{vT+2}, v{vT+1}, 3, v{vT+2}")
    e(f"s_lshl_b32 s{sT3}, s2, 6")
    g.label("L_poll")
    e(f"buffer_load_dwordx4 {vr(t,4)}, v{vT}, s[{SW}:{SW+3}], s{sT2} offen sc1")
    e(f"s_add_u32 s{sCNT}, s{sCNT}, 1")
    e(f"s_cmp_ge_u32 s{sCNT}, 0x100000")
    e(f"s_waitcnt vmcnt(0)")
    e(f"v_max3_u32 v{t+4}, v{t}, v{t+1}, v{t+2}")
    e(f"v_max_u32 v{t+4}, v{t+4}, v{t+3}")
    e(f"v_cmp_eq_u32 vcc, -1, v{t+4}")
    e(f"s_cbranch_scc1 L_got")
    e(f"s_cbranch_vccnz L_poll")
    g.label("L_got")
    e(f"v_permlane32_swap_b32 v{t}, v{t+2}")
    e(f"v_permlane32_swap_b32 v{t+1}, v{t+3}")
    e(f"v_add_f32 v{t}, v{t}, v{t+2}")
    e(f"v_add_f32 v{t+1}, v{t+1}, v{t+3}")
    e(f"s_nop 1")
    e(f"v_permlane16_swap_b32 v{t}, v{t+1}")
    e(f"v_add_f32 v{t}, v{t}, v{t+1}")
    e(f"s_nop 1")
    e(f"v_add_f32_dpp v{t}, v{t}, v{t} row_ror:8 row_mask:0xf bank_mask:0xf")
    e(f"v_cvt_pk_bf16_f32 v{t}, v{t}, v{t}")
    e(f"s_mov_b32 exec_lo, 0x00ff00ff")
    e(f"s_mov_b32 exec_hi, 0x00ff00ff")
    e(f"buffer_store_short v{t}, v{vT+2}, s[{SO}:{SO+3}], s{sT3} offen")
    g.label("L_exit")
    if stamps:
        e("s_waitcnt vmcnt(0)")
        e("s_memrealtime s[70:71]")
        e("s_waitcnt lgkmcnt(0)")
        e("s_mov_b64 exec, 1")
        for i in range(4):
            e(f"v_mov_b32 v{8+i}, s{64+2*i}")
        e(f"s_lshl_b32 s56, s2, 7")
        e(f"s_lshl_b32 s57, s3, 4")
        e(f"s_add_u32 s56, s56, s57")
        e(f"s_add_u32 s56, s56, {1<<20}")
        e(f"buffer_store_dwordx4 v[8:11], off, s[{SW}:{SW+3}], s56")
    g.label("L_end")
    e("s_endpgm")

    out = HEADER
    out += f"; @launch grid=(256,1,1) block=(512,1,1) lds={LDS_SIZE}\n"
    out += f""".amdgcn_target "amdgcn-amd-amdhsa--gfx950"
.text
.globl {NAME}
.p2align 8
.type {NAME},@function
{NAME}:
"""
    out += g.text()
    out += f""".section .rodata,"a"
.p2align 6
.amdhsa_kernel {NAME}
  .amdhsa_next_free_vgpr {NV}
  .amdhsa_next_free_sgpr 96
  .amdhsa_accum_offset {NV}
  .amdhsa_group_segment_fixed_size 0
  .amdhsa_kernarg_size 64
  .amdhsa_user_sgpr_count 2
  .amdhsa_user_sgpr_kernarg_segment_ptr 1
  .amdhsa_system_sgpr_workgroup_id_x 1
  .amdhsa_float_denorm_mode_32 3
.end_amdhsa_kernel
"""
    return out

if __name__ == "__main__":
    import ast
    kw = {}
    for a in sys.argv[2:]:
        k, v = a.split("=")
        try: kw[k] = ast.literal_eval(v)
        except Exception: kw[k] = v
    open(sys.argv[1], "w").write(gen(**kw))
```

```python
import sys
from gen import G, vr, HEADER, NAME

def gen(F=12, pol="nt", stamps=False, sync=True, noef=False, efpol="",
        itA=1, itP=9, itPc=11, itQ=21, itQc=23, aslot=6, lds=0, pre=4, ND=8, rot=None):
    g = G()
    e = g.e
    SK, SV, SE, SF, SQ, SO, SD, SW = 4, 8, 12, 16, 20, 24, 28, 32
    sLO, sHI, sOFF, sEOFF = 36, 37, 38, 39
    sT0, sT1, sT2, sT3 = 56, 57, 58, 59
    sWSL, sHEAD, sCNT, sIT = 60, 61, 62, 63
    sKV0, sE0 = 72, 73
    sSB, sSS, sLEAD, sCT, sVB = 74, 75, 76, 77, 78
    vKV, vEF = 1, 2
    vT = 4
    vX = 10
    vQ = 16
    vTK = 16
    P = 20
    vA = 24
    vACC = 32
    vB = 64
    vR = 96
    NR = 16
    Y = vR + NR * 4
    NV = Y + 16
    assert F <= 14 and aslot >= F - 9 and ND % 2 == 0
    NSV = 32 - ND
    OUT0, SC0, CT0 = 0, 0x40000, 0x48000
    polf = " " + pol if pol else ""
    efp = " " + efpol if efpol else ""

    def stamp(idx):
        if stamps:
            e(f"s_memrealtime s[{64+2*idx}:{65+2*idx}]")

    e(f"s_load_dwordx16 s[40:55], s[0:1], 0")
    e(f"s_cmp_ge_u32 s2, 256")
    e(f"s_cbranch_scc1 L_end")
    stamp(0)
    e(f"v_and_b32 v{vT}, 15, v0                ; c")
    e(f"v_bfe_u32 v{vT+1}, v0, 4, 2            ; g")
    e(f"v_lshrrev_b32 v{vT+2}, 6, v0           ; h")
    e(f"v_lshlrev_b32 v{vX}, 4, v{vT}")
    e(f"v_lshl_add_u32 v{vX}, v{vT+2}, 8, v{vX}      ; h*256 + c*16")
    e(f"v_lshl_add_u32 v{vKV}, v{vT+1}, 12, v{vX}")
    e(f"v_lshlrev_b32 v{vEF}, 4, v{vT+1}")
    e(f"v_lshl_add_u32 v{vEF}, v{vT}, 14, v{vEF}     ; c*16384 + g*16")
    e(f"s_mov_b32 s{SK+2}, 0x8000000")
    e(f"s_mov_b32 s{SK+3}, 0x20000")
    e(f"s_mov_b32 s{SE+2}, 0x40000")
    e(f"s_mov_b32 s{SE+3}, 0x20000")
    e(f"s_lshl_b32 s{sKV0}, s2, 19")
    sTC, sROT = 79, 88
    e(f"s_mov_b32 s{sROT}, 0")
    for wb, mask in (rot or ()):
        e(f"s_bitcmp1_b32 s2, {wb}")
        e(f"s_cselect_b32 s{sT0}, {hex(mask)}, 0")
        e(f"s_xor_b32 s{sROT}, s{sROT}, s{sT0}")
    e(f"s_or_b32 s{sKV0}, s{sKV0}, s{sROT}")
    e(f"s_mov_b32 s{sTC}, 0")
    e(f"s_mov_b32 s{sOFF}, s{sKV0}")
    e(f"s_bfe_u32 s{sEOFF}, s{sOFF}, 0xe0008")
    e(f"v_readfirstlane_b32 s3, v{vT+2}")
    e(f"s_waitcnt lgkmcnt(0)")
    e(f"s_mov_b64 s[{SK}:{SK+1}], s[42:43]")
    e(f"s_mov_b64 s[{SE}:{SE+1}], s[46:47]")

    DYN0 = 32 + NSV
    drains = []
    def request(T):
        e(f"v_mov_b32 v{vTK+(T&1)}, 1")
        e(f"s_mov_b64 exec, 1")
        g.vmem(f"buffer_atomic_add v{vTK+(T&1)}, off, s[{SW}:{SW+3}], s{sCT} sc0", f"R{T}")
        e(f"s_mov_b64 exec, -1")

    def issue(m, n=None):
        T, k = m >> 3, m & 7
        if ND == 0 and m >= 512:
            return
        ph = int(T >= 32)
        if k == 0 and m > 0:
            if T < DYN0:
                if T == 32:
                    e(f"s_mov_b32 s{sTC}, 0")
                else:
                    e(f"s_add_u32 s{sTC}, s{sTC}, 0x4000")
                e(f"s_xor_b32 s{sOFF}, s{sTC}, s{sKV0}")
                e(f"s_bfe_u32 s{sEOFF}, s{sOFF}, 0xe0008")
            else:
                g.wait({f"R{T}"})
                e(f"v_readfirstlane_b32 s{sT0}, v{vTK+(T&1)}")
                e(f"s_add_u32 s{sT0}, s{sT0}, 1")
                e(f"s_cmp_ge_u32 s{sT0}, {8*ND}")
                lab = f"L_drain{len(drains)}"
                drains.append((lab, n, m, list(g.vm)))
                e(f"s_cbranch_scc1 {lab}")
                e(f"s_and_b32 s{sT1}, s{sT0}, 7")
                e(f"s_lshr_b32 s{sT0}, s{sT0}, 3")
                e(f"s_lshl_b32 s{sT1}, s{sT1}, 5")
                e(f"s_add_u32 s{sT0}, s{sT0}, s{sT1}")
                e(f"s_add_u32 s{sT0}, s{sT0}, {NSV}")
                e(f"s_lshl_b32 s{sOFF}, s{sT0}, 14")
                e(f"s_xor_b32 s{sOFF}, s{sOFF}, s{sVB}")
                e(f"s_bfe_u32 s{sEOFF}, s{sOFF}, 0xe0008")
            if ND and T + 2 >= DYN0:
                request(T + 2)
        if k == aslot and not noef:
            srd = SF if ph else SE
            g.vmem(f"buffer_load_dwordx4 {vr(vA+(T&1)*4,4)}, v{vEF}, s[{srd}:{srd+3}], s{sEOFF} offen{efp}", f"A{T}")
        srd = SV if ph else SK
        r = vR + (m % NR) * 4
        g.vmem(f"buffer_load_dwordx4 {vr(r,4)}, v{vKV}, s[{srd}:{srd+3}], s{sOFF} offen offset:{k*512}{polf}", f"L{m}")

    def consume(n):
        if not (n & 1):
            return
        T, q = n >> 3, (n >> 1) & 3
        x0 = vR + ((n - 1) % NR) * 4
        x1 = vR + (n % NR) * 4
        def perm(i):
            sel = sHI if (i & 1) else sLO
            e(f"v_perm_b32 v{vB+i*4+q}, v{x1+(i>>1)}, v{x0+(i>>1)}, s{sel}")
        def mfma(i):
            acc = vACC + i * 4
            e(f"v_mfma_f32_16x16x32_bf16 {vr(acc,4)}, {vr(vA+(T&1)*4,4)}, {vr(vB+i*4,4)}, {vr(acc,4)}")
        if q != 3:
            for i in range(8):
                perm(i)
            return
        perm(0); perm(1); perm(2)
        for i in range(8):
            mfma(i)
            if i + 3 < 8:
                perm(i + 3)

    def body(it):
        for n in range(it * 16, it * 16 + 16):
            g.wait({f"L{n}"})
            m = n + F
            if (m & 7) == aslot and (m >> 3) - 2 >= (n >> 3):
                assert (m >> 3) - 2 == (n >> 3) and (n & 7) == 7, (n, m)
                consume(n)
                issue(m, n)
            else:
                issue(m, n)
                consume(n)

    for n in range(F):
        issue(n)
    e(f"s_mov_b64 s[{SF}:{SF+1}], s[48:49]")
    e(f"s_mov_b64 s[{SV}:{SV+1}], s[44:45]")
    e(f"s_mov_b64 s[{SQ}:{SQ+1}], s[40:41]")
    e(f"s_mov_b64 s[{SO}:{SO+1}], s[50:51]")
    e(f"s_mov_b64 s[{SD}:{SD+1}], s[52:53]")
    e(f"s_mov_b64 s[{SW}:{SW+1}], s[54:55]")
    for sr, sz in ((SV, 0x8000000), (SF, 0x40000), (SQ, 0x4000), (SO, 0x4000), (SD, 256), (SW, 0x20000000)):
        e(f"s_mov_b32 s{sr+2}, {hex(sz)}")
        e(f"s_mov_b32 s{sr+3}, 0x20000")
    e(f"s_mov_b32 s{sLO}, 0x05040100")
    e(f"s_mov_b32 s{sHI}, 0x07060302")
    e(f"s_lshr_b32 s{sHEAD}, s2, 3")
    e(f"s_lshl_b32 s{sVB}, s{sHEAD}, 22")
    e(f"s_or_b32 s{sVB}, s{sVB}, s{sROT}")
    e(f"s_lshl_b32 s{sWSL}, s2, 10")
    e(f"s_lshl_b32 s{sSS}, s2, 7")
    e(f"s_add_u32 s{sSS}, s{sSS}, {hex(SC0)}")
    e(f"s_lshl_b32 s{sSB}, s{sHEAD}, 10")
    e(f"s_lshl_b32 s{sT0}, s3, 9")
    e(f"s_add_u32 s{sCT}, s{sSB}, s{sT0}")
    e(f"s_add_u32 s{sCT}, s{sCT}, {hex(CT0)}")
    e(f"s_add_u32 s{sSB}, s{sSB}, {hex(SC0)}")
    e(f"s_xor_b32 s{sT1}, s{sHEAD}, s2")
    e(f"s_and_b32 s{sT1}, s{sT1}, 7")
    e(f"s_or_b32 s{sLEAD}, s{sT1}, s3")
    e(f"s_lshl_b32 s{sT1}, s{sHEAD}, 9")
    g.c("extra requests (not in the window count) only make the counted waits below stricter")
    e(f"buffer_load_dwordx4 {vr(vQ,4)}, v{vX}, s[{SQ}:{SQ+3}], s{sT1} offen")
    if sync:
        g.c("one wave per head marks all hand-off slots of the head as empty")
        e(f"s_cmp_eq_u32 s{sLEAD}, 0")
        e(f"s_cbranch_scc0 L_noC")
        for r in range(4):
            e(f"v_mov_b32 v{P+r}, -1")
        e(f"v_lshlrev_b32 v{vT+3}, 4, v0")
        e(f"v_lshlrev_b32 v{vT+4}, 8, v0")
        e(f"s_lshl_b32 s{sT0}, s{sHEAD}, 13")
        e(f"s_add_u32 s{sT1}, s{sT0}, 0x1000")
        e(f"buffer_store_dwordx4 {vr(P,4)}, v{vT+3}, s[{SW}:{SW+3}], s{sSB} offen sc1")
        for k in range(8):
            e(f"buffer_store_dwordx4 {vr(P,4)}, v{vT+3}, s[{SW}:{SW+3}], s{sT0 if k < 4 else sT1} offen offset:{(k&3)*1024} sc1")
        e(f"s_mov_b64 exec, 0xf")
        e(f"buffer_store_dword v{P}, v{vT+4}, s[{SW}:{SW+3}], s{sCT} offen sc1")
        e(f"s_mov_b64 exec, -1")
        g.label("L_noC")
    for r in range(32):
        e(f"v_mov_b32 v{vACC+r}, 0")
    e(f"v_lshlrev_b32 v{vX+1}, 6, v{vT}")
    e(f"v_lshl_add_u32 v{vX+1}, v{vT+1}, 4, v{vX+1}")
    e(f"v_lshlrev_b32 v{vX+2}, 6, v{vT+2}")
    e(f"v_lshl_add_u32 v{vX+2}, v{vT+1}, 4, v{vX+2}")
    e(f"v_lshlrev_b32 v{vX+3}, 9, v{vT+2}")
    e(f"v_lshl_add_u32 v{vX+3}, v{vT}, 5, v{vX+3}")
    e(f"v_lshl_add_u32 v{vX+3}, v{vT+1}, 3, v{vX+3}")
    e(f"v_lshrrev_b32 v{vX+5}, 1, v{vX+3}")
    for k in range(1, 8):
        e(f"s_xor_b32 s{80+k}, s{sWSL}, {k << 10}")
    e(f"s_mov_b32 s{sIT}, 0")

    def shift(vm, dit):
        out = []
        for t in vm:
            out.append(f"{t[0]}{int(t[1:]) + dit*(16 if t[0] == 'L' else 2)}")
        return out
    def loop(name, first, last, evs):
        entry = list(g.vm)
        g.label(f"L_{name}")
        body(first)
        assert g.vm == shift(entry, 1), (g.vm, entry)
        for it, lab in evs:
            assert first <= it <= last
            e(f"s_cmp_eq_u32 s{sIT}, {it}")
            e(f"s_cbranch_scc1 L_{lab}")
        g.label(f"L_{name}_back")
        e(f"s_add_u32 s{sIT}, s{sIT}, 1")
        e(f"s_cmp_le_u32 s{sIT}, {last}")
        e(f"s_cbranch_scc1 L_{name}")
        g.vm = shift(entry, last - first + 1)

    loop("k", 0, 14, [(itA, "evA"), (itP, "evP"), (itPc, "evPc")] if sync else [])
    body(15)
    stamp(2)
    g.c("partial scores of this wave")
    S4 = P
    e("s_nop 1")
    for i in range(8):
        qr = vQ + (i >> 1)
        if i & 1:
            e(f"v_and_b32 v{vT}, 0xffff0000, v{qr}")
        else:
            e(f"v_lshlrev_b32 v{vT}, 16, v{qr}")
        for r in range(4):
            if i == 0:
                e(f"v_mul_f32 v{S4+r}, v{vT}, v{vACC+i*4+r}")
            else:
                e(f"v_fmac_f32 v{S4+r}, v{vT}, v{vACC+i*4+r}")
    for sh in (8, 4, 2, 1):
        for r in range(4):
            e(f"v_add_f32_dpp v{S4+r}, v{S4+r}, v{S4+r} row_ror:{sh} row_mask:0xf bank_mask:0xf")
    for r in range(4):
        e(f"v_min_u32 v{S4+r}, -2, v{S4+r}")
    e(f"s_mov_b32 exec_lo, 0x00010001")
    e(f"s_mov_b32 exec_hi, 0x00010001")
    e(f"buffer_store_dwordx4 {vr(S4,4)}, v{vX+2}, s[{SW}:{SW+3}], s{sSS} offen sc1")
    e(f"s_mov_b64 exec, -1")
    for r in range(32):
        e(f"v_mov_b32 v{vACC+r}, 0")
    e(f"s_mov_b32 s{sIT}, 16")

    def fetch(tag=None):
        for k in range(1, 8):
            ins = f"buffer_load_dwordx2 {vr(Y+2*(k-1),2)}, v{vX+3}, s[{SW}:{SW+3}], s{80+k} offen sc1"
            if tag:
                g.vmem(ins, tag)
            else:
                e(ins)
    def drain(n, m):
        for x in range(n, m):
            if x == m - pre:
                fetch("Y")
            if x & 1:
                g.wait({f"L{x}"})
                consume(x)

    lastplain = 16
    lim = (DYN0 - 2) if ND else 64
    while ((lastplain + 1) * 16 + 15 + F) >> 3 < lim:
        lastplain += 1
    loop("v", 16, lastplain, [(itQ, "evQ"), (itQc, "evQc")])
    it = lastplain + 1
    if ND:
        while ((it * 16 + F + 7) >> 3) < DYN0 + 1:
            body(it)
            it += 1
        entry = list(g.vm)
        g.label("L_dyn")
        body(it)
        assert g.vm == shift(entry, 1), (g.vm, entry)
        e(f"s_branch L_dyn")
        seen = {}
        for lab, n, m, vm in drains:
            g.vm = list(vm)
            start = len(g.lines)
            drain(n, m)
            code = g.lines[start:]
            del g.lines[start:]
            key = "\n".join(code)
            seen.setdefault(key, []).append(lab)
        keys = list(seen)
        for i, key in enumerate(keys):
            for lab in seen[key]:
                g.label(lab)
            g.lines.append(key)
            if i + 1 < len(keys):
                e("s_branch L_epi")
    else:
        n = it * 16
        while n + F < 512:
            g.wait({f"L{n}"})
            issue(n + F, n)
            consume(n)
            n += 1
        drain(n, 512)

    def check():
        e(f"v_max3_u32 v{vT}, v{Y}, v{Y+1}, v{Y+2}")
        e(f"v_max3_u32 v{vT+1}, v{Y+3}, v{Y+4}, v{Y+5}")
        e(f"v_max3_u32 v{vT}, v{vT}, v{Y+6}, v{Y+7}")
        e(f"v_max3_u32 v{vT+1}, v{vT+1}, v{Y+8}, v{Y+9}")
        e(f"v_max3_u32 v{vT}, v{vT}, v{Y+10}, v{Y+11}")
        e(f"v_max3_u32 v{vT+1}, v{vT+1}, v{Y+12}, v{Y+13}")
        e(f"v_max_u32 v{vT}, v{vT}, v{vT+1}")
        e(f"v_cmp_eq_u32 vcc, -1, v{vT}")
    g.label("L_epi")
    t = vR
    e("s_nop 0")
    for i in range(8):
        a = vACC + i * 4
        e(f"v_mul_f32 v{t+i}, v{P}, v{a}")
        e(f"v_fmac_f32 v{t+i}, v{P+1}, v{a+1}")
        e(f"v_fmac_f32 v{t+i}, v{P+2}, v{a+2}")
        e(f"v_fmac_f32 v{t+i}, v{P+3}, v{a+3}")
    e("s_nop 1")
    for m in range(4):
        e(f"v_permlane32_swap_b32 v{t+m}, v{t+m+4}")
    for m in range(4):
        e(f"v_add_f32 v{t+m}, v{t+m}, v{t+m+4}")
    e("s_nop 1")
    for m in range(2):
        e(f"v_permlane16_swap_b32 v{t+m}, v{t+m+2}")
    for m in range(2):
        e(f"v_add_f32 v{t+m}, v{t+m}, v{t+m+2}")
    for m in range(2):
        e(f"v_min_u32 v{t+m}, -2, v{t+m}")
    stamp(1)
    g.c("early look at the peers: if all seven have published, this wave finishes the head")
    e(f"buffer_store_dwordx2 {vr(t,2)}, v{vX+3}, s[{SW}:{SW+3}], s{sWSL} offen sc1")
    e(f"s_lshl_b32 s{sT3}, s{sHEAD}, 9")
    e(f"s_waitcnt vmcnt(1)")
    check()
    e(f"s_cbranch_vccz L_fin")
    g.c("own partial is visible after this wait; count the arrival and look again")
    e(f"s_add_u32 s{sT0}, s{sCT}, 256")
    e(f"s_mov_b32 s{sT1}, 1")
    e(f"s_mov_b32 s{sCNT}, 0")
    e(f"s_waitcnt vmcnt(0)")
    e(f"s_atomic_add s{sT1}, s[54:55], s{sT0} glc")
    g.label("L_again")
    fetch()
    e(f"s_waitcnt vmcnt(0)")
    check()
    e(f"s_cbranch_vccz L_fin")
    g.c("the arrival counter starts at -1: the eighth arrival must finish the head")
    e(f"s_waitcnt lgkmcnt(0)")
    e(f"s_cmp_eq_u32 s{sT1}, 6")
    e(f"s_cbranch_scc0 L_exit")
    e(f"s_add_u32 s{sCNT}, s{sCNT}, 1")
    e(f"s_cmp_lt_u32 s{sCNT}, 0x100000")
    e(f"s_cbranch_scc1 L_again")
    g.label("L_fin")
    for m in range(2):
        e(f"v_add_f32 v{Y+2+m}, v{Y+2+m}, v{Y+4+m}")
        e(f"v_add_f32 v{Y+6+m}, v{Y+6+m}, v{Y+8+m}")
        e(f"v_add_f32 v{Y+10+m}, v{Y+10+m}, v{Y+12+m}")
        e(f"v_add_f32 v{t+2+m}, v{t+m}, v{Y+m}")
    for m in range(2):
        e(f"v_add_f32 v{Y+6+m}, v{Y+6+m}, v{Y+10+m}")
        e(f"v_add_f32 v{t+2+m}, v{t+2+m}, v{Y+2+m}")
    for m in range(2):
        e(f"v_add_f32 v{t+2+m}, v{t+2+m}, v{Y+6+m}")
    e(f"v_cvt_pk_bf16_f32 v{t+2}, v{t+2}, v{t+3}")
    e(f"buffer_store_dword v{t+2}, v{vX+5}, s[{SO}:{SO+3}], s{sT3} offen")
    g.label("L_exit")
    if stamps:
        e("s_waitcnt vmcnt(0)")
        e("s_memrealtime s[70:71]")
        e("s_waitcnt lgkmcnt(0)")
        e("s_mov_b64 exec, 1")
        for i in range(4):
            e(f"v_mov_b32 v{8+i}, s{64+2*i}")
        e(f"s_lshl_b32 s56, s2, 5")
        e(f"s_lshl_b32 s57, s3, 4")
        e(f"s_add_u32 s56, s56, s57")
        e(f"s_add_u32 s56, s56, {1<<20}")
        e(f"buffer_store_dwordx4 v[8:11], off, s[{SW}:{SW+3}], s56")
    g.label("L_end")
    e("s_endpgm")

    if sync:
        g.label("L_evA")
        g.c("the marking stores were issued more than one full window ago, so they have completed")
        e(f"s_cmp_eq_u32 s{sLEAD}, 0")
        e(f"s_cbranch_scc0 L_k_back")
        e(f"s_lshl_b32 s{sT0}, s{sHEAD}, 2")
        e(f"v_mov_b32 v{vT}, 1")
        e(f"s_mov_b64 exec, 1")
        e(f"buffer_store_dword v{vT}, off, s[{SD}:{SD+3}], s{sT0} sc1")
        e(f"s_mov_b64 exec, -1")
        e(f"s_branch L_k_back")
        g.label("L_evP")
        e(f"s_lshl_b32 s{sT0}, s{sHEAD}, 2")
        e(f"buffer_load_dword v{vT+5}, off, s[{SD}:{SD+3}], s{sT0} sc1")
        e(f"s_branch L_k_back")
        g.label("L_evPc")
        e(f"s_mov_b32 s{sCNT}, 0")
        g.label("L_chkP")
        e(f"v_readfirstlane_b32 s{sT1}, v{vT+5}")
        e(f"s_cmp_lg_u32 s{sT1}, 0")
        e(f"s_cbranch_scc1 L_k_back")
        e(f"buffer_load_dword v{vT+5}, off, s[{SD}:{SD+3}], s{sT0} sc1")
        e(f"s_add_u32 s{sCNT}, s{sCNT}, 1")
        e(f"s_cmp_lt_u32 s{sCNT}, 0x100000")
        e(f"s_waitcnt vmcnt(0)")
        e(f"s_cbranch_scc1 L_chkP")
        e(f"s_branch L_k_back")
    g.label("L_evQ")
    e(f"buffer_load_dwordx4 {vr(P,4)}, v{vX+1}, s[{SW}:{SW+3}], s{sSB} offen sc1")
    e(f"s_branch L_v_back")
    g.label("L_evQc")
    e(f"s_mov_b32 s{sCNT}, 0")
    g.label("L_chkQ")
    e(f"v_max3_u32 v{vT}, v{P}, v{P+1}, v{P+2}")
    e(f"v_max_u32 v{vT}, v{vT}, v{P+3}")
    e(f"v_cmp_eq_u32 vcc, -1, v{vT}")
    e(f"s_cbranch_vccz L_okQ")
    e(f"buffer_load_dwordx4 {vr(P,4)}, v{vX+1}, s[{SW}:{SW+3}], s{sSB} offen sc1")
    e(f"s_add_u32 s{sCNT}, s{sCNT}, 1")
    e(f"s_cmp_lt_u32 s{sCNT}, 0x100000")
    e(f"s_waitcnt vmcnt(0)")
    e(f"s_cbranch_scc1 L_chkQ")
    g.label("L_okQ")
    for sh in (8, 4, 2, 1):
        for r in range(4):
            e(f"v_add_f32_dpp v{P+r}, v{P+r}, v{P+r} row_ror:{sh} row_mask:0xf bank_mask:0xf")
    g.c("softmax over the 16 scores (4 regs x 4 lane groups)")
    e(f"v_max3_f32 v{vT}, v{P}, v{P+1}, v{P+2}")
    e(f"v_max_f32 v{vT}, v{vT}, v{P+3}")
    e(f"v_mov_b32 v{vT+1}, v{vT}")
    e(f"s_nop 1")
    e(f"v_permlane32_swap_b32 v{vT}, v{vT+1}")
    e(f"v_max_f32 v{vT}, v{vT}, v{vT+1}")
    e(f"v_mov_b32 v{vT+1}, v{vT}")
    e(f"s_nop 1")
    e(f"v_permlane16_swap_b32 v{vT}, v{vT+1}")
    e(f"v_max_f32 v{vT}, v{vT}, v{vT+1}")
    e(f"s_mov_b32 s{sT0}, 0x3db8aa3b          ; log2(e)/16")
    for r in range(4):
        e(f"v_sub_f32 v{P+r}, v{P+r}, v{vT}")
    for r in range(4):
        e(f"v_mul_f32 v{P+r}, s{sT0}, v{P+r}")
    for r in range(4):
        e(f"v_exp_f32 v{P+r}, v{P+r}")
    e(f"s_nop 0")
    e(f"v_add_f32 v{vT}, v{P}, v{P+1}")
    e(f"v_add_f32 v{vT+1}, v{P+2}, v{P+3}")
    e(f"v_add_f32 v{vT}, v{vT}, v{vT+1}")
    e(f"v_mov_b32 v{vT+1}, v{vT}")
    e(f"s_nop 1")
    e(f"v_permlane32_swap_b32 v{vT}, v{vT+1}")
    e(f"v_add_f32 v{vT}, v{vT}, v{vT+1}")
    e(f"v_mov_b32 v{vT+1}, v{vT}")
    e(f"s_nop 1")
    e(f"v_permlane16_swap_b32 v{vT}, v{vT+1}")
    e(f"v_add_f32 v{vT}, v{vT}, v{vT+1}")
    e(f"v_rcp_f32 v{vT}, v{vT}")
    e(f"s_nop 0")
    for r in range(4):
        e(f"v_mul_f32 v{P+r}, v{P+r}, v{vT}")
    e(f"s_branch L_v_back")

    out = HEADER
    out += f"; @launch grid=(256,1,1) block=(128,1,1) lds={lds}\n"
    out += f""".amdgcn_target "amdgcn-amd-amdhsa--gfx950"
.text
.globl {NAME}
.p2align 8
.type {NAME},@function
{NAME}:
"""
    out += g.text()
    out += f""".section .rodata,"a"
.p2align 6
.amdhsa_kernel {NAME}
  .amdhsa_next_free_vgpr {NV}
  .amdhsa_next_free_sgpr 96
  .amdhsa_accum_offset {NV}
  .amdhsa_group_segment_fixed_size 0
  .amdhsa_kernarg_size 64
  .amdhsa_user_sgpr_count 2
  .amdhsa_user_sgpr_kernarg_segment_ptr 1
  .amdhsa_system_sgpr_workgroup_id_x 1
  .amdhsa_float_denorm_mode_32 3
.end_amdhsa_kernel
"""
    return out

if __name__ == "__main__":
    import ast
    kw = {}
    for a in sys.argv[2:]:
        k, v = a.split("=")
        try: kw[k] = ast.literal_eval(v)
        except Exception: kw[k] = v
    open(sys.argv[1], "w").write(gen(**kw))
```

```python
import sys
from gen import G, vr, HEADER, NAME

b_ = lambda *x: sum(1 << i for i in x)
ROTS = dict(R0=(), R1=((3, b_(16)), (4, b_(17)), (5, b_(18)), (6, b_(15, 16))), R5=((5, b_(15)), (6, b_(16))),
            R6=((3, b_(16)), (4, b_(15, 16))), R7=((5, b_(15)), (6, b_(16)), (7, b_(17))))

def gen(F=12, pol="nt", stamps=False, itS=None, itQ=21, itQc=23, aslot=6, lds=0, pre=4, ND=6, rot="R5",
        mid=False, tstamp=0, SPIN=0x40000, fin="a2a", npoll=1):
    g = G()
    e = g.e
    SK, SV, SE, SF, SQ, SO, SW = 4, 8, 12, 16, 20, 24, 32
    sLO, sHI, sOFF, sEOFF = 36, 37, 38, 39
    sT0, sT1, sT2, sT3 = 56, 57, 58, 59
    sWSL, sHEAD, sCNT, sIT = 60, 61, 62, 63
    sKV0, sTC, sROT = 72, 73, 74
    sSB, sSS, sCT, sVB = 75, 76, 77, 78
    sTAG, sTB, sAB = 28, 29, 30
    vKV, vEF = 1, 2
    vT = 4
    vX = 10
    vQ = 16
    vTK = 16
    P = 20
    vA = 24
    vACC = 32
    vB = 64
    vR = 96
    NR = 16
    Y = vR + NR * 4
    NV = Y + 28
    assert F <= 14 and aslot >= F - 9 and ND % 2 == 0 and ND > 0
    NSV = 32 - ND
    OUT0, SC0, CT0 = 0, 0x80000, 0x90000
    polf = " " + pol if pol else ""

    def stamp(idx):
        if stamps:
            e(f"s_memrealtime s[{64+2*idx}:{65+2*idx}]")

    e(f"s_load_dwordx16 s[40:55], s[0:1], 0")
    e(f"s_cmp_ge_u32 s2, 256")
    e(f"s_cbranch_scc1 L_end")
    stamp(0)
    e(f"v_and_b32 v{vT}, 15, v0                ; c")
    e(f"v_bfe_u32 v{vT+1}, v0, 4, 2            ; g")
    e(f"v_lshrrev_b32 v{vT+2}, 6, v0           ; h")
    e(f"v_lshlrev_b32 v{vX}, 4, v{vT}")
    e(f"v_lshl_add_u32 v{vX}, v{vT+2}, 8, v{vX}      ; h*256 + c*16")
    e(f"v_lshl_add_u32 v{vKV}, v{vT+1}, 12, v{vX}")
    e(f"v_lshlrev_b32 v{vEF}, 4, v{vT+1}")
    e(f"v_lshl_add_u32 v{vEF}, v{vT}, 14, v{vEF}     ; c*16384 + g*16")
    e(f"s_mov_b32 s{SK+2}, 0x8000000")
    e(f"s_mov_b32 s{SK+3}, 0x20000")
    e(f"s_mov_b32 s{SE+2}, 0x40000")
    e(f"s_mov_b32 s{SE+3}, 0x20000")
    e(f"s_lshl_b32 s{sKV0}, s2, 19")
    if rot == "R5":
        e(f"s_bfe_u32 s{sROT}, s2, 0x20005")
        e(f"s_lshl_b32 s{sROT}, s{sROT}, 15")
    else:
        e(f"s_mov_b32 s{sROT}, 0")
        for wb, mask in ROTS[rot]:
            e(f"s_bitcmp1_b32 s2, {wb}")
            e(f"s_cselect_b32 s{sT0}, {hex(mask)}, 0")
            e(f"s_xor_b32 s{sROT}, s{sROT}, s{sT0}")
    e(f"s_or_b32 s{sKV0}, s{sKV0}, s{sROT}")
    e(f"s_mov_b32 s{sTC}, 0")
    e(f"s_mov_b32 s{sOFF}, s{sKV0}")
    e(f"s_bfe_u32 s{sEOFF}, s{sOFF}, 0xe0008")
    e(f"v_readfirstlane_b32 s3, v{vT+2}")
    e(f"s_waitcnt lgkmcnt(0)")
    e(f"s_mov_b64 s[{SK}:{SK+1}], s[42:43]")
    e(f"s_mov_b64 s[{SE}:{SE+1}], s[46:47]")

    DYN0 = 32 + NSV
    drains = []
    def request(T):
        e(f"v_mov_b32 v{vTK+(T&1)}, 1")
        e(f"s_mov_b64 exec, 1")
        g.vmem(f"buffer_atomic_add v{vTK+(T&1)}, off, s[{SW}:{SW+3}], s{sCT} sc0", f"R{T}")
        e(f"s_mov_b64 exec, -1")

    def issue(m, n=None):
        T, k = m >> 3, m & 7
        ph = int(T >= 32)
        if k == 0 and m > 0:
            if T < DYN0:
                if T == 32:
                    e(f"s_mov_b32 s{sTC}, 0")
                else:
                    e(f"s_add_u32 s{sTC}, s{sTC}, 0x4000")
                e(f"s_xor_b32 s{sOFF}, s{sTC}, s{sKV0}")
            else:
                g.wait({f"R{T}"})
                e(f"v_readfirstlane_b32 s{sT0}, v{vTK+(T&1)}")
                e(f"s_sub_u32 s{sT0}, s{sT0}, s{sTB}")
                e(f"s_cmp_ge_u32 s{sT0}, {8*ND}")
                lab = f"L_drain{len(drains)}"
                drains.append((lab, n, m, list(g.vm)))
                e(f"s_cbranch_scc1 {lab}")
                e(f"s_and_b32 s{sT1}, s{sT0}, 7")
                e(f"s_lshr_b32 s{sT0}, s{sT0}, 3")
                e(f"s_lshl_b32 s{sT1}, s{sT1}, 5")
                e(f"s_add_u32 s{sT0}, s{sT0}, s{sT1}")
                e(f"s_add_u32 s{sT0}, s{sT0}, {NSV}")
                e(f"s_lshl_b32 s{sOFF}, s{sT0}, 14")
                e(f"s_xor_b32 s{sOFF}, s{sOFF}, s{sVB}")
            e(f"s_bfe_u32 s{sEOFF}, s{sOFF}, 0xe0008")
            if T + 2 >= DYN0:
                request(T + 2)
        if k == aslot:
            srd = SF if ph else SE
            g.vmem(f"buffer_load_dwordx4 {vr(vA+(T&1)*4,4)}, v{vEF}, s[{srd}:{srd+3}], s{sEOFF} offen", f"A{T}")
        srd = SV if ph else SK
        r = vR + (m % NR) * 4
        g.vmem(f"buffer_load_dwordx4 {vr(r,4)}, v{vKV}, s[{srd}:{srd+3}], s{sOFF} offen offset:{k*512}{polf}", f"L{m}")

    def consume(n):
        if not (n & 1):
            return
        T, q = n >> 3, (n >> 1) & 3
        x0 = vR + ((n - 1) % NR) * 4
        x1 = vR + (n % NR) * 4
        def perm(i):
            sel = sHI if (i & 1) else sLO
            e(f"v_perm_b32 v{vB+i*4+q}, v{x1+(i>>1)}, v{x0+(i>>1)}, s{sel}")
        def mfma(i):
            acc = vACC + i * 4
            e(f"v_mfma_f32_16x16x32_bf16 {vr(acc,4)}, {vr(vA+(T&1)*4,4)}, {vr(vB+i*4,4)}, {vr(acc,4)}")
        if q != 3:
            for i in range(8):
                perm(i)
            return
        perm(0); perm(1); perm(2)
        for i in range(8):
            mfma(i)
            if i + 3 < 8:
                perm(i + 3)

    def body(it):
        for n in range(it * 16, it * 16 + 16):
            g.wait({f"L{n}"})
            m = n + F
            if (m & 7) == aslot and (m >> 3) - 2 >= (n >> 3):
                assert (m >> 3) - 2 == (n >> 3) and (n & 7) == 7, (n, m)
                consume(n)
                issue(m, n)
            else:
                issue(m, n)
                consume(n)

    for n in range(F):
        issue(n)
    e(f"s_mov_b64 s[{SF}:{SF+1}], s[48:49]")
    e(f"s_mov_b64 s[{SV}:{SV+1}], s[44:45]")
    e(f"s_mov_b64 s[{SQ}:{SQ+1}], s[40:41]")
    e(f"s_mov_b64 s[{SO}:{SO+1}], s[50:51]")
    e(f"s_mov_b64 s[{SW}:{SW+1}], s[54:55]")
    for sr, sz in ((SV, 0x8000000), (SF, 0x40000), (SQ, 0x4000), (SO, 0x4000), (SW, 0x20000000)):
        e(f"s_mov_b32 s{sr+2}, {hex(sz)}")
        e(f"s_mov_b32 s{sr+3}, 0x20000")
    e(f"s_mov_b32 s{sLO}, 0x05040100")
    e(f"s_mov_b32 s{sHI}, 0x07060302")
    e(f"s_lshr_b32 s{sHEAD}, s2, 3")
    e(f"s_lshl_b32 s{sVB}, s{sHEAD}, 22")
    e(f"s_or_b32 s{sVB}, s{sVB}, s{sROT}")
    e(f"s_lshl_b32 s{sWSL}, s2, 11")
    e(f"s_lshl_b32 s{sSS}, s2, 8")
    e(f"s_add_u32 s{sSS}, s{sSS}, {hex(SC0)}")
    e(f"s_lshl_b32 s{sSB}, s{sHEAD}, 11")
    e(f"s_add_u32 s{sSB}, s{sSB}, {hex(SC0)}")
    e(f"s_lshl_b32 s{sT2}, s{sHEAD}, 10")
    e(f"s_add_u32 s{sT2}, s{sT2}, {hex(CT0)}")
    e(f"s_lshl_b32 s{sT0}, s3, 9")
    e(f"s_add_u32 s{sCT}, s{sT2}, s{sT0}")
    e(f"s_lshl_b32 s{sT1}, s{sHEAD}, 9")
    g.c("extra requests (not in the window count) only make the counted waits below stricter")
    e(f"buffer_load_dwordx4 {vr(vQ,4)}, v{vX}, s[{SQ}:{SQ+3}], s{sT1} offen")
    g.c("start values of the head's four counters (nobody changes them before all 16 waves have published scores)")
    e(f"v_and_b32 v{vT+3}, 3, v0")
    e(f"v_lshlrev_b32 v{vT+3}, 8, v{vT+3}")
    e(f"s_mov_b64 exec, 0xf")
    e(f"buffer_load_dword v{vT+5}, v{vT+3}, s[{SW}:{SW+3}], s{sT2} offen sc1")
    e(f"s_mov_b64 exec, -1")
    for r in range(0, 32, 2):
        e(f"v_mov_b64 {vr(vACC+r,2)}, 0")
    e(f"v_lshlrev_b32 v{vX+1}, 7, v{vT}")
    e(f"v_lshl_add_u32 v{vX+1}, v{vT+1}, 5, v{vX+1}")
    e(f"v_lshlrev_b32 v{vX+2}, 7, v{vT+2}")
    e(f"v_lshl_add_u32 v{vX+2}, v{vT+1}, 5, v{vX+2}")
    e(f"v_lshl_add_u32 v{vX+2}, v{vT}, 4, v{vX+2}")
    e(f"v_lshlrev_b32 v{vX+3}, 4, v0")
    e(f"v_lshl_add_u32 v{vX+5}, v{vT+1}, 2, v{vX}")
    if fin == "once":
        for k in range(1, 8):
            e(f"s_xor_b32 s{80+k}, s{sWSL}, {k << 11}")
    else:
        g.c("final gather: lane (src = l>>3, ch = l&7) reads position 8*slice + ch of workgroup src's slot")
        e(f"v_bfe_u32 v{vT+3}, v0, 3, 3")
        e(f"v_and_b32 v{vT+4}, 7, v0")
        e(f"v_lshlrev_b32 v{vX+4}, 11, v{vT+3}")
        e(f"v_lshl_add_u32 v{vX+4}, v{vT+4}, 4, v{vX+4}")
        e(f"v_lshlrev_b32 v{vX+5}, 4, v{vT+4}             ; ch*16")
        e(f"s_and_b32 s{sT0}, s2, 7")
        e(f"s_lshl_b32 s80, s{sHEAD}, 14")
        e(f"s_lshl_b32 s{sT1}, s3, 10")
        e(f"s_add_u32 s80, s80, s{sT1}")
        e(f"s_lshl_b32 s{sT1}, s{sT0}, 7")
        e(f"s_add_u32 s80, s80, s{sT1}")
        g.c("output byte offset: head*512 + h*256 + (slice&1)*128 + (slice>>1)*4 (+ ch*16)")
        e(f"s_lshl_b32 s81, s{sHEAD}, 9")
        e(f"s_lshl_b32 s{sT1}, s3, 8")
        e(f"s_add_u32 s81, s81, s{sT1}")
        e(f"s_and_b32 s{sT1}, s{sT0}, 1")
        e(f"s_lshl_b32 s{sT1}, s{sT1}, 7")
        e(f"s_add_u32 s81, s81, s{sT1}")
        e(f"s_lshr_b32 s{sT1}, s{sT0}, 1")
        e(f"s_lshl_b32 s{sT1}, s{sT1}, 2")
        e(f"s_add_u32 s81, s81, s{sT1}")
    e(f"s_mov_b32 s{sIT}, 0")

    def shift(vm, dit):
        return [f"{t[0]}{int(t[1:]) + dit*(16 if t[0] == 'L' else 2)}" for t in vm]
    def loop(name, first, last, evs):
        entry = list(g.vm)
        g.label(f"L_{name}")
        body(first)
        assert g.vm == shift(entry, 1), (g.vm, entry)
        for it, lab in evs:
            assert first <= it <= last
            e(f"s_cmp_eq_u32 s{sIT}, {it}")
            e(f"s_cbranch_scc1 L_{lab}")
        g.label(f"L_{name}_back")
        e(f"s_add_u32 s{sIT}, s{sIT}, 1")
        e(f"s_cmp_le_u32 s{sIT}, {last}")
        e(f"s_cbranch_scc1 L_{name}")
        g.vm = shift(entry, last - first + 1)

    loop("k", 0, 14, [])
    body(15)
    if tstamp == 0:
        stamp(2)
    g.c("partial scores of this wave")
    e(f"s_lshl_b32 s{sT0}, s3, 1")
    e(f"s_add_u32 s{sT1}, s{sT0}, 1")
    e(f"v_readlane_b32 s{sTAG}, v{vT+5}, 0")
    e(f"v_readlane_b32 s{sTB}, v{vT+5}, s{sT0}")
    e(f"v_readlane_b32 s{sAB}, v{vT+5}, s{sT1}")
    S4 = P
    for i in range(8):
        qr = vQ + (i >> 1)
        if i & 1:
            e(f"v_and_b32 v{vT}, 0xffff0000, v{qr}")
        else:
            e(f"v_lshlrev_b32 v{vT}, 16, v{qr}")
        for r in range(4):
            if i == 0:
                e(f"v_mul_f32 v{S4+r}, v{vT}, v{vACC+i*4+r}")
            else:
                e(f"v_fmac_f32 v{S4+r}, v{vT}, v{vACC+i*4+r}")
    e(f"s_xor_b32 s{sTAG}, s{sTAG}, 0x5bd1e995")
    for sh in (8, 4, 2, 1):
        for r in range(4):
            e(f"v_add_f32_dpp v{S4+r}, v{S4+r}, v{S4+r} row_ror:{sh} row_mask:0xf bank_mask:0xf")
    e(f"s_mov_b32 vcc_lo, 0x00020002")
    e(f"s_mov_b32 vcc_hi, 0x00020002")
    e(f"v_cndmask_b32 v{Y}, v{S4}, v{S4+2}, vcc")
    e(f"v_mov_b32 v{Y+1}, s{sTAG}")
    e(f"v_cndmask_b32 v{Y+2}, v{S4+1}, v{S4+3}, vcc")
    e(f"v_mov_b32 v{Y+3}, s{sTAG}")
    def emitS():
        e(f"s_mov_b32 exec_lo, 0x00030003")
        e(f"s_mov_b32 exec_hi, 0x00030003")
        e(f"buffer_store_dwordx4 {vr(Y,4)}, v{vX+2}, s[{SW}:{SW+3}], s{sSS} offen sc1")
        e(f"s_mov_b64 exec, -1")
    if itS is None:
        emitS()
    for r in range(0, 32, 2):
        e(f"v_mov_b64 {vr(vACC+r,2)}, 0")
    e(f"s_mov_b32 s{sIT}, 16")

    def fetch(tag=None):
        for k in range(1, 8):
            ins = f"buffer_load_dwordx4 {vr(Y+4*(k-1),4)}, v{vX+3}, s[{SW}:{SW+3}], s{80+k} offen sc1"
            if tag:
                g.vmem(ins, tag)
            else:
                e(ins)
    def drain(n, m):
        for x in range(n, m):
            if x == m - pre and fin == "once":
                fetch("Y")
            if x & 1:
                g.wait({f"L{x}"})
                consume(x)

    lastplain = 16
    while ((lastplain + 1) * 16 + 15 + F) >> 3 < DYN0 - 2:
        lastplain += 1
    loop("v", 16, lastplain, ([(itS, "evS")] if itS else []) + [(itQ, "evQ"), (itQc, "evQc")])
    it = lastplain + 1
    while ((it * 16 + F + 7) >> 3) < DYN0 + 1:
        body(it)
        it += 1
    entry = list(g.vm)
    g.label("L_dyn")
    body(it)
    assert g.vm == shift(entry, 1), (g.vm, entry)
    e(f"s_branch L_dyn")
    seen = {}
    for lab, n, m, vm in drains:
        g.vm = list(vm)
        start = len(g.lines)
        drain(n, m)
        code = g.lines[start:]
        del g.lines[start:]
        seen.setdefault("\n".join(code), []).append(lab)
    keys = list(seen)
    for i, key in enumerate(keys):
        for lab in seen[key]:
            g.label(lab)
        g.lines.append(key)
        if i + 1 < len(keys):
            e("s_branch L_epi")

    def check(regs):
        e(f"v_xor_b32 v{vT}, s{sTAG}, v{regs[0]}")
        e(f"v_xor_b32 v{vT+1}, s{sTAG}, v{regs[1]}")
        for i, r in enumerate(regs[2:]):
            e(f"v_bitop3_b32 v{vT+(i&1)}, v{vT+(i&1)}, v{r}, s{sTAG} bitop3:0xf6")
        e(f"v_or_b32 v{vT}, v{vT}, v{vT+1}")
        e(f"v_cmp_ne_u32 vcc, 0, v{vT}")
    ytags = [Y + 1 + 2 * i for i in range(14)]
    g.label("L_epi")
    t = vR
    e(f"v_mov_b32 v{t+9}, s{sTAG}")
    for i in range(8):
        a = vACC + i * 4
        e(f"v_mul_f32 v{t+i}, v{P}, v{a}")
        e(f"v_fmac_f32 v{t+i}, v{P+1}, v{a+1}")
        e(f"v_fmac_f32 v{t+i}, v{P+2}, v{a+2}")
        e(f"v_fmac_f32 v{t+i}, v{P+3}, v{a+3}")
    e(f"v_mov_b32 v{t+11}, s{sTAG}")
    e(f"s_lshl_b32 s{sT3}, s{sHEAD}, 9")
    for m in range(4):
        e(f"v_permlane32_swap_b32 v{t+m}, v{t+m+4}")
    for m in range(4):
        e(f"v_add_f32 v{t+m}, v{t+m}, v{t+m+4}")
    e("s_nop 1")
    for m in range(2):
        e(f"v_permlane16_swap_b32 v{t+m}, v{t+m+2}")
    for m in range(2):
        e(f"v_add_f32 v{t+8+2*m}, v{t+m}, v{t+m+2}")
    stamp(1)
    if fin == "once":
        g.c("early look at the peers: if all seven have published, this wave finishes the head")
        e(f"buffer_store_dwordx4 {vr(t+8,4)}, v{vX+3}, s[{SW}:{SW+3}], s{sWSL} offen sc1")
        e(f"s_waitcnt vmcnt(1)")
        check(ytags)
        e(f"s_cbranch_vccz L_fin")
        if mid:
            fetch()
        g.c("own partial is visible after this wait; count the arrival and look again")
        e(f"s_add_u32 s{sT0}, s{sCT}, 256")
        e(f"s_mov_b32 s{sT1}, 1")
        e(f"s_mov_b32 s{sCNT}, 0")
        e(f"s_add_u32 s{sAB}, s{sAB}, 7")
        e(f"s_waitcnt vmcnt(0)")
        if mid:
            check(ytags)
            e(f"s_cbranch_vccz L_fin")
        e(f"s_atomic_add s{sT1}, s[54:55], s{sT0} glc")
        g.label("L_again")
        fetch()
        e(f"s_waitcnt vmcnt(0)")
        check(ytags)
        e(f"s_cbranch_vccz L_fin")
        g.c("the eighth arrival must finish the head")
        e(f"s_waitcnt lgkmcnt(0)")
        e(f"s_cmp_eq_u32 s{sT1}, s{sAB}")
        e(f"s_cbranch_scc0 L_exit")
        e(f"s_add_u32 s{sCNT}, s{sCNT}, 1")
        e(f"s_cmp_lt_u32 s{sCNT}, {hex(SPIN)}")
        e(f"s_cbranch_scc1 L_again")
        g.label("L_fin")
        y = lambda k, m: Y + 4 * (k - 1) + 2 * m
        for m in range(2):
            e(f"v_add_f32 v{y(2,m)}, v{y(2,m)}, v{y(3,m)}")
            e(f"v_add_f32 v{y(4,m)}, v{y(4,m)}, v{y(5,m)}")
            e(f"v_add_f32 v{y(6,m)}, v{y(6,m)}, v{y(7,m)}")
            e(f"v_add_f32 v{t+m}, v{t+8+2*m}, v{y(1,m)}")
        for m in range(2):
            e(f"v_add_f32 v{y(4,m)}, v{y(4,m)}, v{y(6,m)}")
            e(f"v_add_f32 v{t+m}, v{t+m}, v{y(2,m)}")
        for m in range(2):
            e(f"v_add_f32 v{t+m}, v{t+m}, v{y(4,m)}")
        e(f"v_cvt_pk_bf16_f32 v{t}, v{t}, v{t+1}")
        e(f"buffer_store_dword v{t}, v{vX+5}, s[{SO}:{SO+3}], s{sT3} offen")
    else:
        e(f"buffer_store_dwordx4 {vr(t+8,4)}, v{vX+3}, s[{SW}:{SW+3}], s{sWSL} offen sc1")
        e(f"s_mov_b32 s{sCNT}, 0")
        if npoll == 1:
            g.label("L_poll")
            e(f"buffer_load_dwordx4 {vr(Y,4)}, v{vX+4}, s[{SW}:{SW+3}], s80 offen sc1")
            e(f"s_add_u32 s{sCNT}, s{sCNT}, 1")
            e(f"s_cmp_ge_u32 s{sCNT}, {hex(SPIN)}")
            e(f"s_waitcnt vmcnt(0)")
            e(f"v_xor_b32 v{vT}, s{sTAG}, v{Y+1}")
            e(f"v_bitop3_b32 v{vT}, v{vT}, v{Y+3}, s{sTAG} bitop3:0xf6")
            e(f"v_cmp_ne_u32 vcc, 0, v{vT}")
            e(f"s_cbranch_scc1 L_got")
            e(f"s_cbranch_vccnz L_poll")
            g.label("L_got")
        else:
            for i in range(npoll - 1):
                e(f"buffer_load_dwordx4 {vr(Y+4+4*i,4)}, v{vX+4}, s[{SW}:{SW+3}], s80 offen sc1")
                e(f"s_nop 15")
                e(f"s_nop 15")
            g.label("L_poll")
            for i in range(npoll):
                nxt = (i + npoll - 1) % npoll
                e(f"buffer_load_dwordx4 {vr(Y+4+4*nxt,4)}, v{vX+4}, s[{SW}:{SW+3}], s80 offen sc1")
                e(f"s_waitcnt vmcnt({npoll-1})")
                e(f"v_xor_b32 v{vT}, s{sTAG}, v{Y+4+4*i+1}")
                e(f"v_bitop3_b32 v{vT}, v{vT}, v{Y+4+4*i+3}, s{sTAG} bitop3:0xf6")
                e(f"v_mov_b32 v{Y}, v{Y+4+4*i}")
                e(f"v_cmp_ne_u32 vcc, 0, v{vT}")
                e(f"v_mov_b32 v{Y+2}, v{Y+4+4*i+2}")
                e(f"s_cbranch_vccz L_got")
            e(f"s_add_u32 s{sCNT}, s{sCNT}, 1")
            e(f"s_cmp_lt_u32 s{sCNT}, {hex(SPIN)}")
            e(f"s_cbranch_scc1 L_poll")
            g.label("L_got")
            e(f"s_nop 0")
        g.c("sum over the 8 sources (lane bits 3..5)")
        e(f"v_add_f32_dpp v{Y}, v{Y}, v{Y} row_ror:8 row_mask:0xf bank_mask:0xf")
        e(f"v_add_f32_dpp v{Y+2}, v{Y+2}, v{Y+2} row_ror:8 row_mask:0xf bank_mask:0xf")
        e(f"v_mov_b32 v{Y+1}, v{Y}")
        e(f"v_mov_b32 v{Y+3}, v{Y+2}")
        e(f"s_nop 0")
        e(f"v_permlane16_swap_b32 v{Y}, v{Y+1}")
        e(f"v_permlane16_swap_b32 v{Y+2}, v{Y+3}")
        e(f"v_add_f32 v{Y}, v{Y}, v{Y+1}")
        e(f"v_add_f32 v{Y+2}, v{Y+2}, v{Y+3}")
        e(f"v_mov_b32 v{Y+1}, v{Y}")
        e(f"v_mov_b32 v{Y+3}, v{Y+2}")
        e(f"s_nop 0")
        e(f"v_permlane32_swap_b32 v{Y}, v{Y+1}")
        e(f"v_permlane32_swap_b32 v{Y+2}, v{Y+3}")
        e(f"v_add_f32 v{Y}, v{Y}, v{Y+1}")
        e(f"v_add_f32 v{Y+2}, v{Y+2}, v{Y+3}")
        e(f"v_cvt_pk_bf16_f32 v{Y}, v{Y}, v{Y+2}")
        e(f"s_mov_b64 exec, 0xff")
        e(f"buffer_store_dword v{Y}, v{vX+5}, s[{SO}:{SO+3}], s81 offen")
    g.label("L_exit")
    if stamps:
        e("s_waitcnt vmcnt(0)")
        e("s_memrealtime s[70:71]")
        e("s_waitcnt lgkmcnt(0)")
        e("s_mov_b64 exec, 1")
        for i in range(4):
            e(f"v_mov_b32 v{8+i}, s{64+2*i}")
        e(f"s_lshl_b32 s56, s2, 5")
        e(f"s_lshl_b32 s57, s3, 4")
        e(f"s_add_u32 s56, s56, s57")
        e(f"s_add_u32 s56, s56, {1<<20}")
        e(f"buffer_store_dwordx4 v[8:11], off, s[{SW}:{SW+3}], s56")
    g.label("L_end")
    e("s_endpgm")

    if itS:
        g.label("L_evS")
        emitS()
        e(f"s_branch L_v_back")
    def emitQ():
        e(f"buffer_load_dwordx4 {vr(Y+4,4)}, v{vX+1}, s[{SW}:{SW+3}], s{sSB} offen sc1")
        e(f"buffer_load_dwordx4 {vr(Y+8,4)}, v{vX+1}, s[{SW}:{SW+3}], s{sSB} offen offset:16 sc1")
    g.label("L_evQ")
    emitQ()
    e(f"s_branch L_v_back")
    g.label("L_evQc")
    if tstamp == 3:
        stamp(2)
    e(f"s_mov_b32 s{sCNT}, 0")
    g.label("L_chkQ")
    check([Y + 5, Y + 7, Y + 9, Y + 11])
    e(f"s_cbranch_vccz L_okQ")
    emitQ()
    e(f"s_add_u32 s{sCNT}, s{sCNT}, 1")
    e(f"s_cmp_lt_u32 s{sCNT}, {hex(SPIN)}")
    e(f"s_waitcnt vmcnt(0)")
    e(f"s_cbranch_scc1 L_chkQ")
    g.label("L_okQ")
    for r in range(4):
        e(f"v_add_f32_dpp v{P+r}, v{Y+4+2*r}, v{Y+4+2*r} row_ror:8 row_mask:0xf bank_mask:0xf")
    for sh in (4, 2, 1):
        for r in range(4):
            e(f"v_add_f32_dpp v{P+r}, v{P+r}, v{P+r} row_ror:{sh} row_mask:0xf bank_mask:0xf")
    g.c("softmax over the 16 scores (4 regs x 4 lane groups)")
    e(f"v_max3_f32 v{vT}, v{P}, v{P+1}, v{P+2}")
    e(f"v_max_f32 v{vT}, v{vT}, v{P+3}")
    e(f"v_mov_b32 v{vT+1}, v{vT}")
    e(f"s_nop 1")
    e(f"v_permlane32_swap_b32 v{vT}, v{vT+1}")
    e(f"v_max_f32 v{vT}, v{vT}, v{vT+1}")
    e(f"v_mov_b32 v{vT+1}, v{vT}")
    e(f"s_nop 1")
    e(f"v_permlane16_swap_b32 v{vT}, v{vT+1}")
    e(f"v_max_f32 v{vT}, v{vT}, v{vT+1}")
    e(f"s_mov_b32 s{sT0}, 0x3db8aa3b          ; log2(e)/16")
    for r in range(4):
        e(f"v_sub_f32 v{P+r}, v{P+r}, v{vT}")
    for r in range(4):
        e(f"v_mul_f32 v{P+r}, s{sT0}, v{P+r}")
    for r in range(4):
        e(f"v_exp_f32 v{P+r}, v{P+r}")
    e(f"s_nop 0")
    e(f"v_add_f32 v{vT}, v{P}, v{P+1}")
    e(f"v_add_f32 v{vT+1}, v{P+2}, v{P+3}")
    e(f"v_add_f32 v{vT}, v{vT}, v{vT+1}")
    e(f"v_mov_b32 v{vT+1}, v{vT}")
    e(f"s_nop 1")
    e(f"v_permlane32_swap_b32 v{vT}, v{vT+1}")
    e(f"v_add_f32 v{vT}, v{vT}, v{vT+1}")
    e(f"v_mov_b32 v{vT+1}, v{vT}")
    e(f"s_nop 1")
    e(f"v_permlane16_swap_b32 v{vT}, v{vT+1}")
    e(f"v_add_f32 v{vT}, v{vT}, v{vT+1}")
    e(f"v_rcp_f32 v{vT}, v{vT}")
    e(f"s_nop 0")
    for r in range(4):
        e(f"v_mul_f32 v{P+r}, v{P+r}, v{vT}")
    e(f"s_branch L_v_back")

    out = HEADER
    out += f"; @launch grid=(256,1,1) block=(128,1,1) lds={lds}\n"
    out += f""".amdgcn_target "amdgcn-amd-amdhsa--gfx950"
.text
.globl {NAME}
.p2align 8
.type {NAME},@function
{NAME}:
"""
    out += g.text()
    out += f""".section .rodata,"a"
.p2align 6
.amdhsa_kernel {NAME}
  .amdhsa_next_free_vgpr {NV}
  .amdhsa_next_free_sgpr 96
  .amdhsa_accum_offset {NV}
  .amdhsa_group_segment_fixed_size 0
  .amdhsa_kernarg_size 64
  .amdhsa_user_sgpr_count 2
  .amdhsa_user_sgpr_kernarg_segment_ptr 1
  .amdhsa_system_sgpr_workgroup_id_x 1
  .amdhsa_float_denorm_mode_32 3
.end_amdhsa_kernel
"""
    return out

if __name__ == "__main__":
    import ast
    kw = {}
    for a in sys.argv[2:]:
        k, v = a.split("=")
        try: kw[k] = ast.literal_eval(v)
        except Exception: kw[k] = v
    open(sys.argv[1], "w").write(gen(**kw))
```

```python
import sys
from gen import G, vr, HEADER, NAME

b_ = lambda *x: sum(1 << i for i in x)
ROTS = dict(R0=(), R1=((3, b_(16)), (4, b_(17)), (5, b_(18)), (6, b_(15, 16))), R5=((5, b_(15)), (6, b_(16))),
            R6=((3, b_(16)), (4, b_(15, 16))), R7=((5, b_(15)), (6, b_(16)), (7, b_(17))))

def gen(F=12, pol="nt", stamps=False, itS=None, itQ=21, itQc=23, aslot=6, lds=0, pre=4, ND=6, rot="R5",
        mid=False, tstamp=0, SPIN=0x40000, fin="a2a", npoll=1, outpol="", fixed=None, nvg=None):
    g = G()
    e = g.e
    SK, SV, SE, SF, SQ, SO, SW = 4, 8, 12, 16, 20, 24, 32
    sLO, sHI, sOFF, sEOFF = 36, 37, 38, 39
    sT0, sT1, sT2, sT3 = 56, 57, 58, 59
    sWSL, sHEAD, sCNT, sIT = 60, 61, 62, 63
    sKV0, sTC, sROT = 72, 73, 74
    sSB, sSS, sCT, sVB = 75, 76, 77, 78
    sTAG, sTB, sAB = 28, 29, 30
    vKV, vEF = 1, 2
    vT = 4
    vX = 10
    vQ = 16
    vTK = 16
    P = 20
    vA = 24
    vACC = 32
    vB = 64
    vR = 96
    NR = 16
    Y = vR + NR * 4
    NV = Y + 28
    assert F <= 14 and aslot >= F - 9 and ND % 2 == 0 and ND > 0
    NSV = 32 - ND
    OUT0, SC0, CT0 = 0, 0x80000, 0x90000
    polf = " " + pol if pol else ""

    def stamp(idx):
        if stamps:
            e(f"s_memrealtime s[{64+2*idx}:{65+2*idx}]")

    e(f"s_load_dwordx16 s[40:55], s[0:1], 0")
    e(f"s_cmp_ge_u32 s2, 256")
    e(f"s_cbranch_scc1 L_end")
    stamp(0)
    if fixed:
        e("s_memrealtime s[64:65]")
    e(f"v_and_b32 v{vT}, 15, v0                ; c")
    e(f"v_bfe_u32 v{vT+1}, v0, 4, 2            ; g")
    e(f"v_lshrrev_b32 v{vT+2}, 6, v0           ; h")
    e(f"v_lshlrev_b32 v{vX}, 4, v{vT}")
    e(f"v_lshl_add_u32 v{vX}, v{vT+2}, 8, v{vX}      ; h*256 + c*16")
    e(f"v_lshl_add_u32 v{vKV}, v{vT+1}, 12, v{vX}")
    e(f"v_lshlrev_b32 v{vEF}, 4, v{vT+1}")
    e(f"v_lshl_add_u32 v{vEF}, v{vT}, 14, v{vEF}     ; c*16384 + g*16")
    e(f"s_mov_b32 s{SK+2}, 0x8000000")
    e(f"s_mov_b32 s{SK+3}, 0x20000")
    e(f"s_mov_b32 s{SE+2}, 0x40000")
    e(f"s_mov_b32 s{SE+3}, 0x20000")
    e(f"s_lshl_b32 s{sKV0}, s2, 19")
    if rot == "R5":
        e(f"s_bfe_u32 s{sROT}, s2, 0x20005")
        e(f"s_lshl_b32 s{sROT}, s{sROT}, 15")
    else:
        e(f"s_mov_b32 s{sROT}, 0")
        for wb, mask in ROTS[rot]:
            e(f"s_bitcmp1_b32 s2, {wb}")
            e(f"s_cselect_b32 s{sT0}, {hex(mask)}, 0")
            e(f"s_xor_b32 s{sROT}, s{sROT}, s{sT0}")
    e(f"s_or_b32 s{sKV0}, s{sKV0}, s{sROT}")
    e(f"s_mov_b32 s{sTC}, 0")
    e(f"s_mov_b32 s{sOFF}, s{sKV0}")
    e(f"s_bfe_u32 s{sEOFF}, s{sOFF}, 0xe0008")
    e(f"v_readfirstlane_b32 s3, v{vT+2}")
    e(f"s_waitcnt lgkmcnt(0)")
    e(f"s_mov_b64 s[{SK}:{SK+1}], s[42:43]")
    e(f"s_mov_b64 s[{SE}:{SE+1}], s[46:47]")

    DYN0 = 32 + NSV
    drains = []
    def request(T):
        e(f"v_mov_b32 v{vTK+(T&1)}, 1")
        e(f"s_mov_b64 exec, 1")
        g.vmem(f"buffer_atomic_add v{vTK+(T&1)}, off, s[{SW}:{SW+3}], s{sCT} sc0", f"R{T}")
        e(f"s_mov_b64 exec, -1")

    def issue(m, n=None):
        T, k = m >> 3, m & 7
        ph = int(T >= 32)
        if k == 0 and m > 0:
            if T < DYN0:
                if T == 32:
                    e(f"s_mov_b32 s{sTC}, 0")
                else:
                    e(f"s_add_u32 s{sTC}, s{sTC}, 0x4000")
                e(f"s_xor_b32 s{sOFF}, s{sTC}, s{sKV0}")
            else:
                g.wait({f"R{T}"})
                e(f"v_readfirstlane_b32 s{sT0}, v{vTK+(T&1)}")
                e(f"s_sub_u32 s{sT0}, s{sT0}, s{sTB}")
                e(f"s_cmp_ge_u32 s{sT0}, {8*ND}")
                lab = f"L_drain{len(drains)}"
                drains.append((lab, n, m, list(g.vm)))
                e(f"s_cbranch_scc1 {lab}")
                e(f"s_and_b32 s{sT1}, s{sT0}, 7")
                e(f"s_lshr_b32 s{sT0}, s{sT0}, 3")
                e(f"s_lshl_b32 s{sT1}, s{sT1}, 5")
                e(f"s_add_u32 s{sT0}, s{sT0}, s{sT1}")
                e(f"s_add_u32 s{sT0}, s{sT0}, {NSV}")
                e(f"s_lshl_b32 s{sOFF}, s{sT0}, 14")
                e(f"s_xor_b32 s{sOFF}, s{sOFF}, s{sVB}")
            e(f"s_bfe_u32 s{sEOFF}, s{sOFF}, 0xe0008")
            if T + 2 >= DYN0:
                request(T + 2)
        if k == aslot:
            srd = SF if ph else SE
            g.vmem(f"buffer_load_dwordx4 {vr(vA+(T&1)*4,4)}, v{vEF}, s[{srd}:{srd+3}], s{sEOFF} offen", f"A{T}")
        srd = SV if ph else SK
        r = vR + (m % NR) * 4
        g.vmem(f"buffer_load_dwordx4 {vr(r,4)}, v{vKV}, s[{srd}:{srd+3}], s{sOFF} offen offset:{k*512}{polf}", f"L{m}")

    def consume(n):
        if not (n & 1):
            return
        T, q = n >> 3, (n >> 1) & 3
        x0 = vR + ((n - 1) % NR) * 4
        x1 = vR + (n % NR) * 4
        def perm(i):
            sel = sHI if (i & 1) else sLO
            e(f"v_perm_b32 v{vB+i*4+q}, v{x1+(i>>1)}, v{x0+(i>>1)}, s{sel}")
        def mfma(i):
            acc = vACC + i * 4
            e(f"v_mfma_f32_16x16x32_bf16 {vr(acc,4)}, {vr(vA+(T&1)*4,4)}, {vr(vB+i*4,4)}, {vr(acc,4)}")
        if q != 3:
            for i in range(8):
                perm(i)
            return
        perm(0); perm(1); perm(2)
        for i in range(8):
            mfma(i)
            if i + 3 < 8:
                perm(i + 3)

    def body(it):
        for n in range(it * 16, it * 16 + 16):
            g.wait({f"L{n}"})
            m = n + F
            if (m & 7) == aslot and (m >> 3) - 2 >= (n >> 3):
                assert (m >> 3) - 2 == (n >> 3) and (n & 7) == 7, (n, m)
                consume(n)
                issue(m, n)
            else:
                issue(m, n)
                consume(n)

    for n in range(F):
        issue(n)
    e(f"s_mov_b64 s[{SF}:{SF+1}], s[48:49]")
    e(f"s_mov_b64 s[{SV}:{SV+1}], s[44:45]")
    e(f"s_mov_b64 s[{SQ}:{SQ+1}], s[40:41]")
    e(f"s_mov_b64 s[{SO}:{SO+1}], s[50:51]")
    e(f"s_mov_b64 s[{SW}:{SW+1}], s[54:55]")
    for sr, sz in ((SV, 0x8000000), (SF, 0x40000), (SQ, 0x4000), (SO, 0x4000), (SW, 0x20000000)):
        e(f"s_mov_b32 s{sr+2}, {hex(sz)}")
        e(f"s_mov_b32 s{sr+3}, 0x20000")
    e(f"s_mov_b32 s{sLO}, 0x05040100")
    e(f"s_mov_b32 s{sHI}, 0x07060302")
    e(f"s_lshr_b32 s{sHEAD}, s2, 3")
    e(f"s_lshl_b32 s{sVB}, s{sHEAD}, 22")
    e(f"s_or_b32 s{sVB}, s{sVB}, s{sROT}")
    e(f"s_lshl_b32 s{sWSL}, s2, 11")
    e(f"s_lshl_b32 s{sSS}, s2, 8")
    e(f"s_add_u32 s{sSS}, s{sSS}, {hex(SC0)}")
    e(f"s_lshl_b32 s{sSB}, s{sHEAD}, 11")
    e(f"s_add_u32 s{sSB}, s{sSB}, {hex(SC0)}")
    e(f"s_lshl_b32 s{sT2}, s{sHEAD}, 10")
    e(f"s_add_u32 s{sT2}, s{sT2}, {hex(CT0)}")
    e(f"s_lshl_b32 s{sT0}, s3, 9")
    e(f"s_add_u32 s{sCT}, s{sT2}, s{sT0}")
    e(f"s_lshl_b32 s{sT1}, s{sHEAD}, 9")
    g.c("extra requests (not in the window count) only make the counted waits below stricter")
    e(f"buffer_load_dwordx4 {vr(vQ,4)}, v{vX}, s[{SQ}:{SQ+3}], s{sT1} offen")
    g.c("start values of the head's four counters (nobody changes them before all 16 waves have published scores)")
    e(f"v_and_b32 v{vT+3}, 3, v0")
    e(f"v_lshlrev_b32 v{vT+3}, 8, v{vT+3}")
    e(f"s_mov_b64 exec, 0xf")
    e(f"buffer_load_dword v{vT+5}, v{vT+3}, s[{SW}:{SW+3}], s{sT2} offen sc1")
    e(f"s_mov_b64 exec, -1")
    for r in range(0, 32, 2):
        e(f"v_mov_b64 {vr(vACC+r,2)}, 0")
    e(f"v_lshlrev_b32 v{vX+1}, 7, v{vT}")
    e(f"v_lshl_add_u32 v{vX+1}, v{vT+1}, 5, v{vX+1}")
    e(f"v_lshlrev_b32 v{vX+2}, 7, v{vT+2}")
    e(f"v_lshl_add_u32 v{vX+2}, v{vT+1}, 5, v{vX+2}")
    e(f"v_lshl_add_u32 v{vX+2}, v{vT}, 4, v{vX+2}")
    e(f"v_lshlrev_b32 v{vX+3}, 4, v0")
    e(f"v_lshl_add_u32 v{vX+5}, v{vT+1}, 2, v{vX}")
    if fin == "once":
        for k in range(1, 8):
            e(f"s_xor_b32 s{80+k}, s{sWSL}, {k << 11}")
    else:
        g.c("final gather: lane (src = l>>3, ch = l&7) reads position 8*slice + ch of workgroup src's slot")
        e(f"v_bfe_u32 v{vT+3}, v0, 3, 3")
        e(f"v_and_b32 v{vT+4}, 7, v0")
        e(f"v_lshlrev_b32 v{vX+4}, 11, v{vT+3}")
        e(f"v_lshl_add_u32 v{vX+4}, v{vT+4}, 4, v{vX+4}")
        e(f"v_lshlrev_b32 v{vX+5}, 4, v{vT+4}             ; ch*16")
        e(f"s_and_b32 s{sT0}, s2, 7")
        e(f"s_lshl_b32 s80, s{sHEAD}, 14")
        e(f"s_lshl_b32 s{sT1}, s3, 10")
        e(f"s_add_u32 s80, s80, s{sT1}")
        e(f"s_lshl_b32 s{sT1}, s{sT0}, 7")
        e(f"s_add_u32 s80, s80, s{sT1}")
        g.c("output byte offset: head*512 + h*256 + (slice&1)*128 + (slice>>1)*4 (+ ch*16)")
        e(f"s_lshl_b32 s81, s{sHEAD}, 9")
        e(f"s_lshl_b32 s{sT1}, s3, 8")
        e(f"s_add_u32 s81, s81, s{sT1}")
        e(f"s_and_b32 s{sT1}, s{sT0}, 1")
        e(f"s_lshl_b32 s{sT1}, s{sT1}, 7")
        e(f"s_add_u32 s81, s81, s{sT1}")
        e(f"s_lshr_b32 s{sT1}, s{sT0}, 1")
        e(f"s_lshl_b32 s{sT1}, s{sT1}, 2")
        e(f"s_add_u32 s81, s81, s{sT1}")
    e(f"s_mov_b32 s{sIT}, 0")

    def shift(vm, dit):
        return [f"{t[0]}{int(t[1:]) + dit*(16 if t[0] == 'L' else 2)}" for t in vm]
    def loop(name, first, last, evs):
        entry = list(g.vm)
        g.label(f"L_{name}")
        body(first)
        assert g.vm == shift(entry, 1), (g.vm, entry)
        for it, lab in evs:
            assert first <= it <= last
            e(f"s_cmp_eq_u32 s{sIT}, {it}")
            e(f"s_cbranch_scc1 L_{lab}")
        g.label(f"L_{name}_back")
        e(f"s_add_u32 s{sIT}, s{sIT}, 1")
        e(f"s_cmp_le_u32 s{sIT}, {last}")
        e(f"s_cbranch_scc1 L_{name}")
        g.vm = shift(entry, last - first + 1)

    loop("k", 0, 14, [])
    body(15)
    if tstamp == 0:
        stamp(2)
    g.c("partial scores of this wave")
    e(f"s_lshl_b32 s{sT0}, s3, 1")
    e(f"s_add_u32 s{sT1}, s{sT0}, 1")
    e(f"v_readlane_b32 s{sTAG}, v{vT+5}, 0")
    e(f"v_readlane_b32 s{sTB}, v{vT+5}, s{sT0}")
    e(f"v_readlane_b32 s{sAB}, v{vT+5}, s{sT1}")
    S4 = P
    for i in range(8):
        qr = vQ + (i >> 1)
        if i & 1:
            e(f"v_and_b32 v{vT}, 0xffff0000, v{qr}")
        else:
            e(f"v_lshlrev_b32 v{vT}, 16, v{qr}")
        for r in range(4):
            if i == 0:
                e(f"v_mul_f32 v{S4+r}, v{vT}, v{vACC+i*4+r}")
            else:
                e(f"v_fmac_f32 v{S4+r}, v{vT}, v{vACC+i*4+r}")
    e(f"s_xor_b32 s{sTAG}, s{sTAG}, 0x5bd1e995")
    for sh in (8, 4, 2, 1):
        for r in range(4):
            e(f"v_add_f32_dpp v{S4+r}, v{S4+r}, v{S4+r} row_ror:{sh} row_mask:0xf bank_mask:0xf")
    e(f"s_mov_b32 vcc_lo, 0x00020002")
    e(f"s_mov_b32 vcc_hi, 0x00020002")
    e(f"v_cndmask_b32 v{Y}, v{S4}, v{S4+2}, vcc")
    e(f"v_mov_b32 v{Y+1}, s{sTAG}")
    e(f"v_cndmask_b32 v{Y+2}, v{S4+1}, v{S4+3}, vcc")
    e(f"v_mov_b32 v{Y+3}, s{sTAG}")
    def emitS():
        e(f"s_mov_b32 exec_lo, 0x00030003")
        e(f"s_mov_b32 exec_hi, 0x00030003")
        e(f"buffer_store_dwordx4 {vr(Y,4)}, v{vX+2}, s[{SW}:{SW+3}], s{sSS} offen sc1")
        e(f"s_mov_b64 exec, -1")
    if itS is None:
        emitS()
    for r in range(0, 32, 2):
        e(f"v_mov_b64 {vr(vACC+r,2)}, 0")
    e(f"s_mov_b32 s{sIT}, 16")

    def fetch(tag=None):
        for k in range(1, 8):
            ins = f"buffer_load_dwordx4 {vr(Y+4*(k-1),4)}, v{vX+3}, s[{SW}:{SW+3}], s{80+k} offen sc1"
            if tag:
                g.vmem(ins, tag)
            else:
                e(ins)
    def drain(n, m):
        for x in range(n, m):
            if x == m - pre and fin == "once":
                fetch("Y")
            if x & 1:
                g.wait({f"L{x}"})
                consume(x)

    lastplain = 16
    while ((lastplain + 1) * 16 + 15 + F) >> 3 < DYN0 - 2:
        lastplain += 1
    loop("v", 16, lastplain, ([(itS, "evS")] if itS else []) + [(itQ, "evQ"), (itQc, "evQc")])
    it = lastplain + 1
    while ((it * 16 + F + 7) >> 3) < DYN0 + 1:
        body(it)
        it += 1
    entry = list(g.vm)
    g.label("L_dyn")
    body(it)
    assert g.vm == shift(entry, 1), (g.vm, entry)
    e(f"s_branch L_dyn")
    seen = {}
    for lab, n, m, vm in drains:
        g.vm = list(vm)
        start = len(g.lines)
        drain(n, m)
        code = g.lines[start:]
        del g.lines[start:]
        seen.setdefault("\n".join(code), []).append(lab)
    keys = list(seen)
    for i, key in enumerate(keys):
        for lab in seen[key]:
            g.label(lab)
        g.lines.append(key)
        if i + 1 < len(keys):
            e("s_branch L_epi")

    def check(regs):
        e(f"v_xor_b32 v{vT}, s{sTAG}, v{regs[0]}")
        e(f"v_xor_b32 v{vT+1}, s{sTAG}, v{regs[1]}")
        for i, r in enumerate(regs[2:]):
            e(f"v_bitop3_b32 v{vT+(i&1)}, v{vT+(i&1)}, v{r}, s{sTAG} bitop3:0xf6")
        e(f"v_or_b32 v{vT}, v{vT}, v{vT+1}")
        e(f"v_cmp_ne_u32 vcc, 0, v{vT}")
    ytags = [Y + 1 + 2 * i for i in range(14)]
    g.label("L_epi")
    t = vR
    e(f"v_mov_b32 v{t+9}, s{sTAG}")
    for i in range(8):
        a = vACC + i * 4
        e(f"v_mul_f32 v{t+i}, v{P}, v{a}")
        e(f"v_fmac_f32 v{t+i}, v{P+1}, v{a+1}")
        e(f"v_fmac_f32 v{t+i}, v{P+2}, v{a+2}")
        e(f"v_fmac_f32 v{t+i}, v{P+3}, v{a+3}")
    e(f"v_mov_b32 v{t+11}, s{sTAG}")
    e(f"s_lshl_b32 s{sT3}, s{sHEAD}, 9")
    for m in range(4):
        e(f"v_permlane32_swap_b32 v{t+m}, v{t+m+4}")
    for m in range(4):
        e(f"v_add_f32 v{t+m}, v{t+m}, v{t+m+4}")
    e("s_nop 1")
    for m in range(2):
        e(f"v_permlane16_swap_b32 v{t+m}, v{t+m+2}")
    for m in range(2):
        e(f"v_add_f32 v{t+8+2*m}, v{t+m}, v{t+m+2}")
    stamp(1)
    if fin == "once":
        g.c("early look at the peers: if all seven have published, this wave finishes the head")
        e(f"buffer_store_dwordx4 {vr(t+8,4)}, v{vX+3}, s[{SW}:{SW+3}], s{sWSL} offen sc1")
        e(f"s_waitcnt vmcnt(1)")
        check(ytags)
        e(f"s_cbranch_vccz L_fin")
        if mid:
            fetch()
        g.c("own partial is visible after this wait; count the arrival and look again")
        e(f"s_add_u32 s{sT0}, s{sCT}, 256")
        e(f"s_mov_b32 s{sT1}, 1")
        e(f"s_mov_b32 s{sCNT}, 0")
        e(f"s_add_u32 s{sAB}, s{sAB}, 7")
        e(f"s_waitcnt vmcnt(0)")
        if mid:
            check(ytags)
            e(f"s_cbranch_vccz L_fin")
        e(f"s_atomic_add s{sT1}, s[54:55], s{sT0} glc")
        g.label("L_again")
        fetch()
        e(f"s_waitcnt vmcnt(0)")
        check(ytags)
        e(f"s_cbranch_vccz L_fin")
        g.c("the eighth arrival must finish the head")
        e(f"s_waitcnt lgkmcnt(0)")
        e(f"s_cmp_eq_u32 s{sT1}, s{sAB}")
        e(f"s_cbranch_scc0 L_exit")
        e(f"s_add_u32 s{sCNT}, s{sCNT}, 1")
        e(f"s_cmp_lt_u32 s{sCNT}, {hex(SPIN)}")
        e(f"s_cbranch_scc1 L_again")
        g.label("L_fin")
        y = lambda k, m: Y + 4 * (k - 1) + 2 * m
        for m in range(2):
            e(f"v_add_f32 v{y(2,m)}, v{y(2,m)}, v{y(3,m)}")
            e(f"v_add_f32 v{y(4,m)}, v{y(4,m)}, v{y(5,m)}")
            e(f"v_add_f32 v{y(6,m)}, v{y(6,m)}, v{y(7,m)}")
            e(f"v_add_f32 v{t+m}, v{t+8+2*m}, v{y(1,m)}")
        for m in range(2):
            e(f"v_add_f32 v{y(4,m)}, v{y(4,m)}, v{y(6,m)}")
            e(f"v_add_f32 v{t+m}, v{t+m}, v{y(2,m)}")
        for m in range(2):
            e(f"v_add_f32 v{t+m}, v{t+m}, v{y(4,m)}")
        e(f"v_cvt_pk_bf16_f32 v{t}, v{t}, v{t+1}")
        e(f"buffer_store_dword v{t}, v{vX+5}, s[{SO}:{SO+3}], s{sT3} offen")
    else:
        e(f"buffer_store_dwordx4 {vr(t+8,4)}, v{vX+3}, s[{SW}:{SW+3}], s{sWSL} offen sc1")
        e(f"s_mov_b32 s{sCNT}, 0")
        if npoll == 1:
            g.label("L_poll")
            e(f"buffer_load_dwordx4 {vr(Y,4)}, v{vX+4}, s[{SW}:{SW+3}], s80 offen sc1")
            e(f"s_add_u32 s{sCNT}, s{sCNT}, 1")
            e(f"s_cmp_ge_u32 s{sCNT}, {hex(SPIN)}")
            e(f"s_waitcnt vmcnt(0)")
            e(f"v_xor_b32 v{vT}, s{sTAG}, v{Y+1}")
            e(f"v_bitop3_b32 v{vT}, v{vT}, v{Y+3}, s{sTAG} bitop3:0xf6")
            e(f"v_cmp_ne_u32 vcc, 0, v{vT}")
            e(f"s_cbranch_scc1 L_got")
            e(f"s_cbranch_vccnz L_poll")
            g.label("L_got")
        else:
            for i in range(npoll - 1):
                e(f"buffer_load_dwordx4 {vr(Y+4+4*i,4)}, v{vX+4}, s[{SW}:{SW+3}], s80 offen sc1")
                e(f"s_nop 15")
                e(f"s_nop 15")
            g.label("L_poll")
            for i in range(npoll):
                nxt = (i + npoll - 1) % npoll
                e(f"buffer_load_dwordx4 {vr(Y+4+4*nxt,4)}, v{vX+4}, s[{SW}:{SW+3}], s80 offen sc1")
                e(f"s_waitcnt vmcnt({npoll-1})")
                e(f"v_xor_b32 v{vT}, s{sTAG}, v{Y+4+4*i+1}")
                e(f"v_bitop3_b32 v{vT}, v{vT}, v{Y+4+4*i+3}, s{sTAG} bitop3:0xf6")
                e(f"v_mov_b32 v{Y}, v{Y+4+4*i}")
                e(f"v_cmp_ne_u32 vcc, 0, v{vT}")
                e(f"v_mov_b32 v{Y+2}, v{Y+4+4*i+2}")
                e(f"s_cbranch_vccz L_got")
            e(f"s_add_u32 s{sCNT}, s{sCNT}, 1")
            e(f"s_cmp_lt_u32 s{sCNT}, {hex(SPIN)}")
            e(f"s_cbranch_scc1 L_poll")
            g.label("L_got")
            e(f"s_nop 0")
        g.c("sum over the 8 sources (lane bits 3..5)")
        e(f"v_add_f32_dpp v{Y}, v{Y}, v{Y} row_ror:8 row_mask:0xf bank_mask:0xf")
        e(f"v_add_f32_dpp v{Y+2}, v{Y+2}, v{Y+2} row_ror:8 row_mask:0xf bank_mask:0xf")
        e(f"v_mov_b32 v{Y+1}, v{Y}")
        e(f"v_mov_b32 v{Y+3}, v{Y+2}")
        e(f"s_nop 0")
        e(f"v_permlane16_swap_b32 v{Y}, v{Y+1}")
        e(f"v_permlane16_swap_b32 v{Y+2}, v{Y+3}")
        e(f"v_add_f32 v{Y}, v{Y}, v{Y+1}")
        e(f"v_add_f32 v{Y+2}, v{Y+2}, v{Y+3}")
        e(f"v_mov_b32 v{Y+1}, v{Y}")
        e(f"v_mov_b32 v{Y+3}, v{Y+2}")
        e(f"s_nop 0")
        e(f"v_permlane32_swap_b32 v{Y}, v{Y+1}")
        e(f"v_permlane32_swap_b32 v{Y+2}, v{Y+3}")
        e(f"v_add_f32 v{Y}, v{Y}, v{Y+1}")
        e(f"v_add_f32 v{Y+2}, v{Y+2}, v{Y+3}")
        e(f"v_cvt_pk_bf16_f32 v{Y}, v{Y}, v{Y+2}")
        e(f"s_mov_b64 exec, 0xff")
        e(f"buffer_store_dword v{Y}, v{vX+5}, s[{SO}:{SO+3}], s81 offen{' ' + outpol if outpol else ''}")
    g.label("L_exit")
    if fixed:
        g.label("L_echo")
        e("s_memrealtime s[76:77]")
        e("s_waitcnt lgkmcnt(0)")
        e("s_sub_u32 s57, s76, s64")
        e(f"s_cmp_lt_u32 s57, {fixed}")
        e("s_cbranch_scc1 L_echo")
    if stamps:
        e("s_waitcnt vmcnt(0)")
        e("s_memrealtime s[70:71]")
        e("s_waitcnt lgkmcnt(0)")
        e("s_mov_b64 exec, 1")
        for i in range(4):
            e(f"v_mov_b32 v{8+i}, s{64+2*i}")
        e(f"s_lshl_b32 s56, s2, 5")
        e(f"s_lshl_b32 s57, s3, 4")
        e(f"s_add_u32 s56, s56, s57")
        e(f"s_add_u32 s56, s56, {1<<20}")
        e(f"buffer_store_dwordx4 v[8:11], off, s[{SW}:{SW+3}], s56")
    g.label("L_end")
    e("s_endpgm")

    if itS:
        g.label("L_evS")
        emitS()
        e(f"s_branch L_v_back")
    def emitQ():
        e(f"buffer_load_dwordx4 {vr(Y+4,4)}, v{vX+1}, s[{SW}:{SW+3}], s{sSB} offen sc1")
        e(f"buffer_load_dwordx4 {vr(Y+8,4)}, v{vX+1}, s[{SW}:{SW+3}], s{sSB} offen offset:16 sc1")
    g.label("L_evQ")
    emitQ()
    e(f"s_branch L_v_back")
    g.label("L_evQc")
    if tstamp == 3:
        stamp(2)
    e(f"s_mov_b32 s{sCNT}, 0")
    g.label("L_chkQ")
    check([Y + 5, Y + 7, Y + 9, Y + 11])
    e(f"s_cbranch_vccz L_okQ")
    emitQ()
    e(f"s_add_u32 s{sCNT}, s{sCNT}, 1")
    e(f"s_cmp_lt_u32 s{sCNT}, {hex(SPIN)}")
    e(f"s_waitcnt vmcnt(0)")
    e(f"s_cbranch_scc1 L_chkQ")
    g.label("L_okQ")
    for r in range(4):
        e(f"v_add_f32_dpp v{P+r}, v{Y+4+2*r}, v{Y+4+2*r} row_ror:8 row_mask:0xf bank_mask:0xf")
    for sh in (4, 2, 1):
        for r in range(4):
            e(f"v_add_f32_dpp v{P+r}, v{P+r}, v{P+r} row_ror:{sh} row_mask:0xf bank_mask:0xf")
    g.c("softmax over the 16 scores (4 regs x 4 lane groups)")
    e(f"v_max3_f32 v{vT}, v{P}, v{P+1}, v{P+2}")
    e(f"v_max_f32 v{vT}, v{vT}, v{P+3}")
    e(f"v_mov_b32 v{vT+1}, v{vT}")
    e(f"s_nop 1")
    e(f"v_permlane32_swap_b32 v{vT}, v{vT+1}")
    e(f"v_max_f32 v{vT}, v{vT}, v{vT+1}")
    e(f"v_mov_b32 v{vT+1}, v{vT}")
    e(f"s_nop 1")
    e(f"v_permlane16_swap_b32 v{vT}, v{vT+1}")
    e(f"v_max_f32 v{vT}, v{vT}, v{vT+1}")
    e(f"s_mov_b32 s{sT0}, 0x3db8aa3b          ; log2(e)/16")
    for r in range(4):
        e(f"v_sub_f32 v{P+r}, v{P+r}, v{vT}")
    for r in range(4):
        e(f"v_mul_f32 v{P+r}, s{sT0}, v{P+r}")
    for r in range(4):
        e(f"v_exp_f32 v{P+r}, v{P+r}")
    e(f"s_nop 0")
    e(f"v_add_f32 v{vT}, v{P}, v{P+1}")
    e(f"v_add_f32 v{vT+1}, v{P+2}, v{P+3}")
    e(f"v_add_f32 v{vT}, v{vT}, v{vT+1}")
    e(f"v_mov_b32 v{vT+1}, v{vT}")
    e(f"s_nop 1")
    e(f"v_permlane32_swap_b32 v{vT}, v{vT+1}")
    e(f"v_add_f32 v{vT}, v{vT}, v{vT+1}")
    e(f"v_mov_b32 v{vT+1}, v{vT}")
    e(f"s_nop 1")
    e(f"v_permlane16_swap_b32 v{vT}, v{vT+1}")
    e(f"v_add_f32 v{vT}, v{vT}, v{vT+1}")
    e(f"v_rcp_f32 v{vT}, v{vT}")
    e(f"s_nop 0")
    for r in range(4):
        e(f"v_mul_f32 v{P+r}, v{P+r}, v{vT}")
    e(f"s_branch L_v_back")

    NV = nvg or NV
    out = HEADER
    out += f"; @launch grid=(256,1,1) block=(128,1,1) lds={lds}\n"
    out += f""".amdgcn_target "amdgcn-amd-amdhsa--gfx950"
.text
.globl {NAME}
.p2align 8
.type {NAME},@function
{NAME}:
"""
    out += g.text()
    out += f""".section .rodata,"a"
.p2align 6
.amdhsa_kernel {NAME}
  .amdhsa_next_free_vgpr {NV}
  .amdhsa_next_free_sgpr 96
  .amdhsa_accum_offset {NV}
  .amdhsa_group_segment_fixed_size 0
  .amdhsa_kernarg_size 64
  .amdhsa_user_sgpr_count 2
  .amdhsa_user_sgpr_kernarg_segment_ptr 1
  .amdhsa_system_sgpr_workgroup_id_x 1
  .amdhsa_float_denorm_mode_32 3
.end_amdhsa_kernel
"""
    return out

if __name__ == "__main__":
    import ast
    kw = {}
    for a in sys.argv[2:]:
        k, v = a.split("=")
        try: kw[k] = ast.literal_eval(v)
        except Exception: kw[k] = v
    open(sys.argv[1], "w").write(gen(**kw))
```

```python
import sys
from gen import G, vr, HEADER, NAME

def gen(F=12, F0=None, pol="nt", stamps=False, dQ=2, aslot=6, ND=4, tstamp=0, SPIN=0x40000, fin="a2a", npoll=1,
        outpol="", spread=True, pre=None, fixed=None, R=2, dbg=0, dpol="sc1", dmask=0xff, dsame=False, apol="sc0", GS=8, cstride=None):
    g = G()
    e = g.e
    SK, SV, SE, SF, SQ, SO, SW = 4, 8, 12, 16, 20, 24, 32
    sLO, sHI, sOFF, sEOFF = 36, 37, 38, 39
    sT0, sT1, sT2, sT3 = 56, 57, 58, 59
    sWSL, sHEAD, sCNT, sIT = 60, 61, 62, 63
    sKV0, sTC, sROT = 72, 73, 74
    sSB, sSS, sCT, sVB = 75, 76, 77, 78
    sTAG, sTB, sAB, sLE = 28, 29, 30, 31
    sNX, sLM, sFIN, sGRP, sCI = 88, 89, 90, 93, 94
    vKV, vEF = 1, 2
    vT = 4
    vX = 10
    vQ = 16
    vTK = 16
    P = 20
    vA = 24
    vACC = 32
    vB = 64
    vR = 96
    NR = 16
    Y = vR + NR * 4
    NV = Y + 28
    F0 = F0 or F
    assert F <= 14 and aslot >= F - 9 and ND % 2 == 0 and ND > 0 and F <= F0 <= 16
    NSV = 32 - ND
    NG = 8 // GS
    assert fin == "fix" or GS == 8
    assert R % NG == 0
    RG = R // NG
    LQ = GS * ND - RG
    cstride = cstride or (512 // NG if NG < 4 else 128)
    SC0, CT0 = 0x80000, 0x90000
    polf = " " + pol if pol else ""
    outp = " " + outpol if outpol else ""

    def stamp(idx):
        if stamps:
            e(f"s_memrealtime s[{64+2*idx}:{65+2*idx}]")

    e(f"s_load_dwordx16 s[40:55], s[0:1], 0")
    e(f"s_cmp_ge_u32 s2, 256")
    e(f"s_cbranch_scc1 L_end")
    stamp(0)
    if fixed:
        e("s_memrealtime s[64:65]")
    e(f"v_and_b32 v{vT}, 15, v0                ; c")
    e(f"v_bfe_u32 v{vT+1}, v0, 4, 2            ; g")
    e(f"v_lshrrev_b32 v{vT+2}, 6, v0           ; h")
    e(f"v_lshlrev_b32 v{vX}, 4, v{vT}")
    e(f"v_lshl_add_u32 v{vX}, v{vT+2}, 8, v{vX}      ; h*256 + c*16")
    e(f"v_lshl_add_u32 v{vKV}, v{vT+1}, 12, v{vX}")
    e(f"v_lshlrev_b32 v{vEF}, 4, v{vT+1}")
    e(f"v_lshl_add_u32 v{vEF}, v{vT}, 14, v{vEF}     ; c*16384 + g*16")
    e(f"s_mov_b32 s{SK+2}, 0x8000000")
    e(f"s_mov_b32 s{SK+3}, 0x20000")
    e(f"s_mov_b32 s{SE+2}, 0x40000")
    e(f"s_mov_b32 s{SE+3}, 0x20000")
    e(f"s_lshl_b32 s{sKV0}, s2, 19")
    e(f"s_bfe_u32 s{sROT}, s2, 0x20005")
    e(f"s_lshl_b32 s{sROT}, s{sROT}, 15")
    e(f"s_or_b32 s{sKV0}, s{sKV0}, s{sROT}")
    e(f"s_mov_b32 s{sTC}, 0")
    e(f"s_mov_b32 s{sOFF}, s{sKV0}")
    e(f"s_bfe_u32 s{sEOFF}, s{sOFF}, 0xe0008")
    e(f"v_readfirstlane_b32 s3, v{vT+2}")
    e(f"s_waitcnt lgkmcnt(0)")
    e(f"s_mov_b64 s[{SK}:{SK+1}], s[42:43]")
    e(f"s_mov_b64 s[{SE}:{SE+1}], s[46:47]")

    DYN0 = 32 + NSV
    drains = []
    def request(T):
        e(f"v_mov_b32 v{vTK+(T&1)}, 1")
        e(f"s_mov_b64 exec, 1")
        g.vmem(f"buffer_atomic_add v{vTK+(T&1)}, off, s[{SW}:{SW+3}], s{sCT} sc0", f"R{T}")
        e(f"s_mov_b64 exec, -1")

    def issue(m, n=None):
        T, k = m >> 3, m & 7
        ph = int(T >= 32)
        if k == 0 and m > 0:
            if T < DYN0:
                if T == 32:
                    e(f"s_mov_b32 s{sTC}, 0")
                else:
                    e(f"s_add_u32 s{sTC}, s{sTC}, 0x4000")
                e(f"s_xor_b32 s{sOFF}, s{sTC}, s{sKV0}")
                if T < 32 and n is not None:
                    if dbg & 1:
                        e(f"v_mov_b32 v{Y+20}, 0")
                        e(f"s_mov_b64 exec, 1")
                        e(f"buffer_atomic_add v{Y+20}, off, s[{SW}:{SW+3}], s{sCT} offset:256 {apol}")
                        e(f"s_mov_b64 exec, -1")
                    if dbg & 16:
                        e(f"s_lshl_b32 s{sT0}, s2, 8")
                        e(f"s_lshl_b32 s{sT1}, s3, 7")
                        e(f"s_add_u32 s{sT0}, s{sT0}, s{sT1}")
                        if not dsame:
                            e(f"s_lshl_b32 s{sT1}, s{sTC}, 2")
                            e(f"s_add_u32 s{sT0}, s{sT0}, s{sT1}")
                        e(f"s_add_u32 s{sT0}, s{sT0}, 0x800000")
                        e(f"v_and_b32 v{Y+24}, 63, v0")
                        e(f"v_lshlrev_b32 v{Y+24}, 4, v{Y+24}")
                        e(f"s_mov_b64 exec, {hex(dmask)}")
                        e(f"buffer_store_dwordx4 {vr(Y+20,4)}, v{Y+24}, s[{SW}:{SW+3}], s{sT0} offen {dpol}")
                        e(f"s_mov_b64 exec, -1")
                    if dbg & 8:
                        e(f"s_waitcnt lgkmcnt(0)")
                        e(f"s_mov_b32 s91, 0")
                        e(f"s_add_u32 s92, s{sCT}, 256")
                        e(f"s_atomic_add s91, s[54:55], s92 glc")
                    if dbg & 2:
                        e(f"s_mul_i32 s{sT0}, s3, 0xc000")
                        e(f"s_add_u32 s{sT0}, s{sT0}, s{sTC}")
                        e(f"s_lshl_b32 s{sT0}, s{sT0}, 5")
                        e(f"s_and_b32 s{sT0}, s{sT0}, 0x380000")
                        e(f"s_xor_b32 s{sOFF}, s{sOFF}, s{sT0}")
                    if dbg & 4:
                        e(f"s_lshl_b32 s{sT0}, s{sTC}, 5")
                        e(f"s_and_b32 s{sT0}, s{sT0}, 0x380000")
                        e(f"s_xor_b32 s{sOFF}, s{sOFF}, s{sT0}")
            else:
                g.wait({f"R{T}"})
                e(f"v_readfirstlane_b32 s{sT0}, v{vTK+(T&1)}")
                e(f"s_sub_u32 s{sT0}, s{sT0}, s{sTB}")
                if fin == "fix":
                    e(f"s_cmp_ge_u32 s{sT0}, {LQ}")
                    if NG > 1:
                        e(f"s_mul_i32 s{sT0}, s{sT0}, {NG}")
                        e(f"s_cselect_b32 s{sT1}, 0, s{sGRP}")
                    e(f"s_cselect_b32 s{sT0}, s{sNX}, s{sT0}")
                    e(f"s_addc_u32 s{sNX}, s{sNX}, 0")
                    if NG > 1:
                        e(f"s_add_u32 s{sT0}, s{sT0}, s{sT1}")
                    e(f"s_cmp_ge_u32 s{sT0}, s{sLM}")
                else:
                    e(f"s_cmp_ge_u32 s{sT0}, {8*ND}")
                lab = f"L_drain{len(drains)}"
                drains.append((lab, n, m, list(g.vm)))
                e(f"s_cbranch_scc1 {lab}")
                e(f"s_and_b32 s{sT1}, s{sT0}, 7")
                e(f"s_lshr_b32 s{sT0}, s{sT0}, 3")
                e(f"s_lshl_b32 s{sT1}, s{sT1}, 5")
                e(f"s_add_u32 s{sT0}, s{sT0}, s{sT1}")
                e(f"s_add_u32 s{sT0}, s{sT0}, {NSV}")
                e(f"s_lshl_b32 s{sOFF}, s{sT0}, 14")
                e(f"s_xor_b32 s{sOFF}, s{sOFF}, s{sVB}")
            e(f"s_bfe_u32 s{sEOFF}, s{sOFF}, 0xe0008")
            if T + 2 >= DYN0:
                request(T + 2)
        if k == aslot:
            srd = SF if ph else SE
            g.vmem(f"buffer_load_dwordx4 {vr(vA+(T&1)*4,4)}, v{vEF}, s[{srd}:{srd+3}], s{sEOFF} offen", f"A{T}")
        srd = SV if ph else SK
        r = vR + (m % NR) * 4
        g.vmem(f"buffer_load_dwordx4 {vr(r,4)}, v{vKV}, s[{srd}:{srd+3}], s{sOFF} offen offset:{k*512}{polf}", f"L{m}")

    zero_tiles = set()
    def consume(n):
        if not (n & 1):
            return
        T, q = n >> 3, (n >> 1) & 3
        x0 = vR + ((n - 1) % NR) * 4
        x1 = vR + (n % NR) * 4
        def perm(i):
            sel = sHI if (i & 1) else sLO
            e(f"v_perm_b32 v{vB+i*4+q}, v{x1+(i>>1)}, v{x0+(i>>1)}, s{sel}")
        def mfma(i):
            acc = vACC + i * 4
            cin = "0" if T in zero_tiles else vr(acc, 4)
            e(f"v_mfma_f32_16x16x32_bf16 {vr(acc,4)}, {vr(vA+(T&1)*4,4)}, {vr(vB+i*4,4)}, {cin}")
        if q != 3:
            for i in range(8):
                perm(i)
            return
        perm(0); perm(1); perm(2)
        for i in range(8):
            mfma(i)
            if i + 3 < 8:
                perm(i + 3)

    def body(it, filler=None, slots=None):
        filler = list(filler or [])
        total = sum(len(x) for x in filler)
        emitted = 0
        for n in range(it * 16, it * 16 + 16):
            m = n + F
            skip = m < F0
            if skip and not (n & 1):
                continue
            g.wait({f"L{n}"})
            if skip:
                consume(n)
            elif (m & 7) == aslot and (m >> 3) - 2 >= (n >> 3):
                assert (m >> 3) - 2 == (n >> 3) and (n & 7) == 7, (n, m)
                consume(n)
                issue(m, n)
            else:
                issue(m, n)
                consume(n)
            if filler and (n & 15) in slots:
                want = total * (slots.index(n & 15) + 1) / len(slots)
                while filler and emitted < want:
                    grp = filler.pop(0)
                    for ins in grp:
                        e(ins)
                    emitted += len(grp)
        assert not filler

    for n in range(F0):
        issue(n)
    e(f"s_mov_b64 s[{SF}:{SF+1}], s[48:49]")
    e(f"s_mov_b64 s[{SV}:{SV+1}], s[44:45]")
    e(f"s_mov_b64 s[{SQ}:{SQ+1}], s[40:41]")
    e(f"s_mov_b64 s[{SO}:{SO+1}], s[50:51]")
    e(f"s_mov_b64 s[{SW}:{SW+1}], s[54:55]")
    for sr, sz in ((SV, 0x8000000), (SF, 0x40000), (SQ, 0x4000), (SO, 0x4000), (SW, 0x20000000)):
        e(f"s_mov_b32 s{sr+2}, {hex(sz)}")
        e(f"s_mov_b32 s{sr+3}, 0x20000")
    e(f"s_mov_b32 s{sLO}, 0x05040100")
    e(f"s_mov_b32 s{sHI}, 0x07060302")
    e(f"s_mov_b32 s{sLE}, 0x3db8aa3b          ; log2(e)/16")
    e(f"s_lshr_b32 s{sHEAD}, s2, 3")
    e(f"s_lshl_b32 s{sVB}, s{sHEAD}, 22")
    e(f"s_or_b32 s{sVB}, s{sVB}, s{sROT}")
    e(f"s_lshl_b32 s{sWSL}, s2, 11")
    e(f"s_lshl_b32 s{sSS}, s2, 8")
    e(f"s_add_u32 s{sSS}, s{sSS}, {hex(SC0)}")
    e(f"s_lshl_b32 s{sSB}, s{sHEAD}, 11")
    e(f"s_add_u32 s{sSB}, s{sSB}, {hex(SC0)}")
    if NG == 1:
        e(f"s_lshl_b32 s{sT2}, s{sHEAD}, 10")
        e(f"s_add_u32 s{sT2}, s{sT2}, {hex(CT0)}")
        e(f"s_lshl_b32 s{sT0}, s3, 9")
        e(f"s_add_u32 s{sCT}, s{sT2}, s{sT0}")
        e(f"s_lshl_b32 s{sCI}, s3, 1")
        NCT, CS = 4, 256
    else:
        NCT, CS = 2 * NG, cstride
        if NG == 2:
            e(f"s_bfe_u32 s{sGRP}, s2, 0x10001")
        else:
            e(f"s_lshr_b32 s{sT0}, s2, 1")
            e(f"s_xor_b32 s{sT1}, s{sT0}, s2")
            e(f"s_and_b32 s{sT1}, s{sT1}, 1")
            e(f"s_and_b32 s{sT0}, s{sT0}, 2")
            e(f"s_or_b32 s{sGRP}, s{sT0}, s{sT1}          ; pairs (x, x^3)")
        e(f"s_mul_i32 s{sT2}, s{sHEAD}, {NCT*CS}")
        e(f"s_add_u32 s{sT2}, s{sT2}, {hex(CT0)}")
        e(f"s_mul_i32 s{sCI}, s3, {NG}")
        e(f"s_add_u32 s{sCI}, s{sCI}, s{sGRP}")
        e(f"s_mul_i32 s{sT0}, s{sCI}, {CS}")
        e(f"s_add_u32 s{sCT}, s{sT2}, s{sT0}")
    e(f"s_lshl_b32 s{sT1}, s{sHEAD}, 9")
    peel0 = F0 != F
    def extra(ins):
        if peel0:
            g.vmem(ins, "X0")
        else:
            e(ins)
    g.c("requests outside the window count only make the counted waits below stricter")
    extra(f"buffer_load_dwordx4 {vr(vQ,4)}, v{vX}, s[{SQ}:{SQ+3}], s{sT1} offen")
    g.c("start values of the head's counters (nobody changes them before all 16 waves have published scores)")
    e(f"v_and_b32 v{vT+3}, {NCT-1}, v0")
    e(f"v_mul_u32_u24 v{vT+3}, {CS}, v{vT+3}")
    e(f"s_mov_b64 exec, {hex((1 << NCT) - 1)}")
    extra(f"buffer_load_dword v{vT+5}, v{vT+3}, s[{SW}:{SW+3}], s{sT2} offen sc1")
    e(f"s_mov_b64 exec, -1")
    if not peel0:
        for r in range(0, 32, 2):
            e(f"v_mov_b64 {vr(vACC+r,2)}, 0")
    e(f"v_lshlrev_b32 v{vX+1}, 7, v{vT}")
    e(f"v_lshl_add_u32 v{vX+1}, v{vT+1}, 5, v{vX+1}")
    e(f"v_lshlrev_b32 v{vX+2}, 7, v{vT+2}")
    e(f"v_lshl_add_u32 v{vX+2}, v{vT+1}, 5, v{vX+2}")
    e(f"v_lshl_add_u32 v{vX+2}, v{vT}, 4, v{vX+2}")
    e(f"v_lshlrev_b32 v{vX+3}, 4, v0")
    if fin == "fix":
        e(f"s_lshl_b32 s{sT0}, s3, 2")
        e(f"s_add_u32 s{sT0}, s{sT0}, s{sHEAD}")
        e(f"s_xor_b32 s{sT0}, s{sT0}, s2")
        e(f"s_and_b32 s{sFIN}, s{sT0}, 7")
        e(f"s_mov_b32 s{sNX}, {8*ND-R}")
        e(f"s_cmp_eq_u32 s{sFIN}, 0")
        e(f"s_cselect_b32 s{sLM}, {8*ND}, {8*ND-R}")
    if fin in ("once", "fix"):
        e(f"v_lshl_add_u32 v{vX+5}, v{vT+1}, 2, v{vX}")
        for k in range(1, 8):
            e(f"s_xor_b32 s{80+k}, s{sWSL}, {k << 11}")
        e(f"s_lshl_b32 s80, s{sHEAD}, 9")
    else:
        g.c("final gather: lane (src = l>>3, ch = l&7) reads position 8*slice + ch of workgroup src's slot")
        e(f"v_bfe_u32 v{vT+3}, v0, 3, 3")
        e(f"v_and_b32 v{vT+4}, 7, v0")
        e(f"v_lshlrev_b32 v{vX+4}, 11, v{vT+3}")
        e(f"v_lshl_add_u32 v{vX+4}, v{vT+4}, 4, v{vX+4}")
        e(f"v_lshlrev_b32 v{vX+5}, 4, v{vT+4}             ; ch*16")
        e(f"s_and_b32 s{sT0}, s2, 7")
        e(f"s_lshl_b32 s80, s{sHEAD}, 14")
        e(f"s_lshl_b32 s{sT1}, s3, 10")
        e(f"s_add_u32 s80, s80, s{sT1}")
        e(f"s_lshl_b32 s{sT1}, s{sT0}, 7")
        e(f"s_add_u32 s80, s80, s{sT1}")
        g.c("output byte offset: head*512 + h*256 + (slice&1)*128 + (slice>>1)*4 (+ ch*16)")
        e(f"s_lshl_b32 s81, s{sHEAD}, 9")
        e(f"s_lshl_b32 s{sT1}, s3, 8")
        e(f"s_add_u32 s81, s81, s{sT1}")
        e(f"s_and_b32 s{sT1}, s{sT0}, 1")
        e(f"s_lshl_b32 s{sT1}, s{sT1}, 7")
        e(f"s_add_u32 s81, s81, s{sT1}")
        e(f"s_lshr_b32 s{sT1}, s{sT0}, 1")
        e(f"s_lshl_b32 s{sT1}, s{sT1}, 2")
        e(f"s_add_u32 s81, s81, s{sT1}")

    def shift(vm, dit):
        return [f"{t[0]}{int(t[1:]) + dit*(16 if t[0] == 'L' else 2)}" for t in vm]
    def loop(name, first, last, evs):
        e(f"s_mov_b32 s{sIT}, {first}")
        entry = list(g.vm)
        g.label(f"L_{name}")
        body(first)
        assert g.vm == shift(entry, 1), (g.vm, entry)
        for it, lab in evs:
            assert first <= it <= last
            e(f"s_cmp_eq_u32 s{sIT}, {it}")
            e(f"s_cbranch_scc1 L_{lab}")
        g.label(f"L_{name}_back")
        e(f"s_add_u32 s{sIT}, s{sIT}, 1")
        e(f"s_cmp_le_u32 s{sIT}, {last}")
        e(f"s_cbranch_scc1 L_{name}")
        g.vm = shift(entry, last - first + 1)

    if peel0:
        zero_tiles.add(0)
        body(0)
        g.vm = [t for t in g.vm if t[0] != "X"]
        loop("k", 1, 14, [])
    else:
        loop("k", 0, 14, [])
    body(15)
    if tstamp == 0:
        stamp(2)
    S4 = P
    sc = []
    sc.append([f"s_add_u32 s{sT3}, s{sCI}, 1",
               f"v_readlane_b32 s{sTAG}, v{vT+5}, 0", f"v_readlane_b32 s{sTB}, v{vT+5}, s{sCI}"] +
              ([f"v_readlane_b32 s{sAB}, v{vT+5}, s{sT3}"] if fin == "once" else []))
    for i in range(8):
        qr = vQ + (i >> 1)
        grp = [f"v_and_b32 v{vT}, 0xffff0000, v{qr}" if i & 1 else f"v_lshlrev_b32 v{vT}, 16, v{qr}"]
        for r in range(4):
            grp.append(f"{'v_fmac_f32' if i else 'v_mul_f32'} v{S4+r}, v{vT}, v{vACC+i*4+r}")
        sc.append(grp)
    sc2 = [[f"s_xor_b32 s{sTAG}, s{sTAG}, 0x5bd1e995"]]
    for sh in (8, 4, 2, 1):
        sc2.append([f"v_add_f32_dpp v{S4+r}, v{S4+r}, v{S4+r} row_ror:{sh} row_mask:0xf bank_mask:0xf" for r in range(4)])
    sc2.append([f"s_mov_b32 vcc_lo, 0x00020002", f"s_mov_b32 vcc_hi, 0x00020002",
                f"v_cndmask_b32 v{Y}, v{S4}, v{S4+2}, vcc", f"v_mov_b32 v{Y+1}, s{sTAG}",
                f"v_cndmask_b32 v{Y+2}, v{S4+1}, v{S4+3}, vcc", f"v_mov_b32 v{Y+3}, s{sTAG}"])
    sc2.append([f"s_mov_b32 exec_lo, 0x00030003", f"s_mov_b32 exec_hi, 0x00030003",
                f"buffer_store_dwordx4 {vr(Y,4)}, v{vX+2}, s[{SW}:{SW+3}], s{sSS} offen sc1",
                f"s_mov_b64 exec, -1"])
    g.c("iteration 16 also computes and publishes the partial scores of this wave")
    zero_tiles.add(32)
    if spread:
        n1 = sum(map(len, sc)); n2 = sum(map(len, sc2))
        class Two(list):
            pass
        def body16():
            filler_a, filler_b = list(sc), list(sc2)
            sl_a, sl_b = [0, 2, 4, 6], [8, 10, 12]
            ea = eb = 0
            for n in range(256, 272):
                g.wait({f"L{n}"})
                m = n + F
                if (m & 7) == aslot and (m >> 3) - 2 >= (n >> 3):
                    consume(n); issue(m, n)
                else:
                    issue(m, n); consume(n)
                k = n & 15
                if k in sl_a:
                    want = n1 * (sl_a.index(k) + 1) / len(sl_a)
                    while filler_a and ea < want:
                        grp = filler_a.pop(0); ea += len(grp)
                        for ins in grp: e(ins)
                if k in sl_b:
                    want = n2 * (sl_b.index(k) + 1) / len(sl_b)
                    while filler_b and eb < want:
                        grp = filler_b.pop(0); eb += len(grp)
                        for ins in grp: e(ins)
            assert not filler_a and not filler_b
        body16()
    else:
        for grp in sc + sc2:
            for ins in grp:
                e(ins)
        body(16)

    def fetch(tag=None):
        for k in range(1, 8):
            ins = f"buffer_load_dwordx4 {vr(Y+4*(k-1),4)}, v{vX+3}, s[{SW}:{SW+3}], s{80+k} offen sc1"
            if tag:
                g.vmem(ins, tag)
            else:
                e(ins)
    fdr = {}
    def drain(n, m):
        for x in range(n, m):
            if pre and x == m - pre and fin == "once":
                fetch("Y")
            if pre and x == m - pre and fin == "fix":
                g.wait({f"L{m-1}"}) if False else None
                e(f"s_cmp_eq_u32 s{sFIN}, 0")
                e(f"s_cbranch_scc1 L_fdrain{m & 15}")
                fdr[m & 15] = (x, m, list(g.vm))
            if x & 1:
                g.wait({f"L{x}"})
                consume(x)
    def check(regs):
        e(f"v_xor_b32 v{vT}, s{sTAG}, v{regs[0]}")
        e(f"v_xor_b32 v{vT+1}, s{sTAG}, v{regs[1]}")
        for i, r in enumerate(regs[2:]):
            e(f"v_bitop3_b32 v{vT+(i&1)}, v{vT+(i&1)}, v{r}, s{sTAG} bitop3:0xf6")
        e(f"v_or_b32 v{vT}, v{vT}, v{vT+1}")
        e(f"v_cmp_ne_u32 vcc, 0, v{vT}")

    lastplain = 17
    while ((lastplain + 1) * 16 + 15 + F) >> 3 < DYN0 - 2:
        lastplain += 1
    assert dQ >= 1
    loop("v", 17, lastplain, [(lastplain - dQ, "evQ")])
    if tstamp == 3:
        stamp(2)
    g.c("the scores of all 16 waves of this head were requested more than one window ago")
    g.label("L_chkQ")
    check([Y + 5, Y + 7, Y + 9, Y + 11])
    e(f"s_cbranch_vccnz L_retryQ")
    g.label("L_okQ")
    sm = []
    sm.append([f"v_add_f32_dpp v{P+r}, v{Y+4+2*r}, v{Y+4+2*r} row_ror:8 row_mask:0xf bank_mask:0xf" for r in range(4)])
    for sh in (4, 2, 1):
        sm.append([f"v_add_f32_dpp v{P+r}, v{P+r}, v{P+r} row_ror:{sh} row_mask:0xf bank_mask:0xf" for r in range(4)])
    sm.append([f"v_max3_f32 v{vT}, v{P}, v{P+1}, v{P+2}", f"v_max_f32 v{vT}, v{vT}, v{P+3}",
               f"v_mov_b32 v{vT+1}, v{vT}", "s_nop 1", f"v_permlane32_swap_b32 v{vT}, v{vT+1}",
               f"v_max_f32 v{vT}, v{vT}, v{vT+1}"])
    sm.append([f"v_mov_b32 v{vT+1}, v{vT}", "s_nop 1", f"v_permlane16_swap_b32 v{vT}, v{vT+1}",
               f"v_max_f32 v{vT}, v{vT}, v{vT+1}"])
    sm.append([f"v_sub_f32 v{P+r}, v{P+r}, v{vT}" for r in range(4)])
    sm.append([f"v_mul_f32 v{P+r}, s{sLE}, v{P+r}" for r in range(4)])
    sm.append([f"v_exp_f32 v{P+r}, v{P+r}" for r in range(4)] + ["s_nop 0"])
    sm.append([f"v_add_f32 v{vT}, v{P}, v{P+1}", f"v_add_f32 v{vT+1}, v{P+2}, v{P+3}", f"v_add_f32 v{vT}, v{vT}, v{vT+1}",
               f"v_mov_b32 v{vT+1}, v{vT}", "s_nop 1", f"v_permlane32_swap_b32 v{vT}, v{vT+1}",
               f"v_add_f32 v{vT}, v{vT}, v{vT+1}"])
    sm.append([f"v_mov_b32 v{vT+1}, v{vT}", "s_nop 1", f"v_permlane16_swap_b32 v{vT}, v{vT+1}",
               f"v_add_f32 v{vT}, v{vT}, v{vT+1}", f"v_rcp_f32 v{vT}, v{vT}", "s_nop 0"])
    sm.append([f"v_mul_f32 v{P+r}, v{P+r}, v{vT}" for r in range(4)])
    it = lastplain + 1
    g.c("softmax over the 16 scores (4 registers x 4 lane groups), spread over this iteration")
    nd0 = len(drains)
    if spread:
        body(it, sm, [0, 2, 4, 6, 8, 10, 12, 14])
    else:
        for grp in sm:
            for ins in grp:
                e(ins)
        body(it)
    assert len(drains) == nd0
    it += 1
    while ((it * 16 + F + 7) >> 3) < DYN0 + 1:
        body(it)
        it += 1
    entry = list(g.vm)
    g.label("L_dyn")
    body(it)
    assert g.vm == shift(entry, 1), (g.vm, entry)
    e(f"s_branch L_dyn")
    seen = {}
    for lab, n, m, vm in drains:
        g.vm = list(vm)
        start = len(g.lines)
        drain(n, m)
        code = g.lines[start:]
        del g.lines[start:]
        seen.setdefault("\n".join(code), []).append(lab)
    for par, (x0, m, vm) in fdr.items():
        g.vm = list(vm)
        g.label(f"L_fdrain{par}")
        fetch("Y")
        for x in range(x0, m):
            if x & 1:
                g.wait({f"L{x}"})
                consume(x)
        e("s_branch L_epi")
    keys = list(seen)
    for i, key in enumerate(keys):
        for lab in seen[key]:
            g.label(lab)
        g.lines.append(key)
        if i + 1 < len(keys):
            e("s_branch L_epi")

    ytags = [Y + 1 + 2 * i for i in range(14)]
    g.label("L_epi")
    t = vR
    e(f"v_mov_b32 v{t+9}, s{sTAG}")
    for i in range(8):
        a = vACC + i * 4
        e(f"v_mul_f32 v{t+i}, v{P}, v{a}")
        e(f"v_fmac_f32 v{t+i}, v{P+1}, v{a+1}")
        e(f"v_fmac_f32 v{t+i}, v{P+2}, v{a+2}")
        e(f"v_fmac_f32 v{t+i}, v{P+3}, v{a+3}")
    e(f"v_mov_b32 v{t+11}, s{sTAG}")
    e(f"s_mov_b32 s{sCNT}, 0")
    for m in range(4):
        e(f"v_permlane32_swap_b32 v{t+m}, v{t+m+4}")
    for m in range(4):
        e(f"v_add_f32 v{t+m}, v{t+m}, v{t+m+4}")
    e("s_nop 1")
    for m in range(2):
        e(f"v_permlane16_swap_b32 v{t+m}, v{t+m+2}")
    for m in range(2):
        e(f"v_add_f32 v{t+8+2*m}, v{t+m}, v{t+m+2}")
    stamp(1)
    if fin == "fix":
        e(f"s_cmp_eq_u32 s{sFIN}, 0")
        e(f"s_cbranch_scc1 {'L_look' if pre else 'L_again'}")
    e(f"buffer_store_dwordx4 {vr(t+8,4)}, v{vX+3}, s[{SW}:{SW+3}], s{sWSL} offen sc1")
    if fin == "fix":
        e(f"s_branch L_exit")
        g.label("L_again")
        fetch()
        g.label("L_look")
        e(f"s_add_u32 s{sCNT}, s{sCNT}, 1")
        e(f"s_cmp_ge_u32 s{sCNT}, {hex(SPIN)}")
        e(f"s_waitcnt vmcnt(0)")
        check(ytags)
        e(f"s_cbranch_scc1 L_fin")
        e(f"s_cbranch_vccnz L_again")
    if fin == "once":
        if pre:
            g.c("early look at the peers: if all seven have published, this wave finishes the head")
            e(f"s_waitcnt vmcnt(1)")
            check(ytags)
            e(f"s_cbranch_vccz L_fin")
        g.c("own partial is visible after this wait; count the arrival and look at the peers")
        e(f"s_add_u32 s{sT0}, s{sCT}, 256")
        e(f"s_mov_b32 s{sT1}, 1")
        e(f"s_add_u32 s{sAB}, s{sAB}, 7")
        e(f"s_waitcnt vmcnt(0)")
        e(f"s_atomic_add s{sT1}, s[54:55], s{sT0} glc")
        g.label("L_again")
        fetch()
        e(f"s_waitcnt vmcnt(0)")
        check(ytags)
        e(f"s_cbranch_vccz L_fin")
        g.c("the eighth arrival must finish the head")
        e(f"s_waitcnt lgkmcnt(0)")
        e(f"s_cmp_eq_u32 s{sT1}, s{sAB}")
        e(f"s_cbranch_scc0 L_exit")
        e(f"s_add_u32 s{sCNT}, s{sCNT}, 1")
        e(f"s_cmp_lt_u32 s{sCNT}, {hex(SPIN)}")
        e(f"s_cbranch_scc1 L_again")
    if fin in ("once", "fix"):
        g.label("L_fin")
        y = lambda k, m: Y + 4 * (k - 1) + 2 * m
        for m in range(2):
            e(f"v_add_f32 v{y(2,m)}, v{y(2,m)}, v{y(3,m)}")
            e(f"v_add_f32 v{y(4,m)}, v{y(4,m)}, v{y(5,m)}")
            e(f"v_add_f32 v{y(6,m)}, v{y(6,m)}, v{y(7,m)}")
            e(f"v_add_f32 v{t+m}, v{t+8+2*m}, v{y(1,m)}")
        for m in range(2):
            e(f"v_add_f32 v{y(4,m)}, v{y(4,m)}, v{y(6,m)}")
            e(f"v_add_f32 v{t+m}, v{t+m}, v{y(2,m)}")
        for m in range(2):
            e(f"v_add_f32 v{t+m}, v{t+m}, v{y(4,m)}")
        e(f"v_cvt_pk_bf16_f32 v{t}, v{t}, v{t+1}")
        e(f"buffer_store_dword v{t}, v{vX+5}, s[{SO}:{SO+3}], s80 offen{outp}")
    else:
        if npoll == 1:
            g.label("L_poll")
            e(f"buffer_load_dwordx4 {vr(Y,4)}, v{vX+4}, s[{SW}:{SW+3}], s80 offen sc1")
            e(f"s_add_u32 s{sCNT}, s{sCNT}, 1")
            e(f"s_cmp_ge_u32 s{sCNT}, {hex(SPIN)}")
            e(f"s_waitcnt vmcnt(0)")
            e(f"v_xor_b32 v{vT}, s{sTAG}, v{Y+1}")
            e(f"v_bitop3_b32 v{vT}, v{vT}, v{Y+3}, s{sTAG} bitop3:0xf6")
            e(f"v_cmp_ne_u32 vcc, 0, v{vT}")
            e(f"s_cbranch_scc1 L_got")
            e(f"s_cbranch_vccnz L_poll")
            g.label("L_got")
        else:
            for i in range(npoll - 1):
                e(f"buffer_load_dwordx4 {vr(Y+4+4*i,4)}, v{vX+4}, s[{SW}:{SW+3}], s80 offen sc1")
            g.label("L_poll")
            for i in range(npoll):
                nxt = (i + npoll - 1) % npoll
                e(f"buffer_load_dwordx4 {vr(Y+4+4*nxt,4)}, v{vX+4}, s[{SW}:{SW+3}], s80 offen sc1")
                e(f"s_waitcnt vmcnt({npoll-1})")
                e(f"v_xor_b32 v{vT}, s{sTAG}, v{Y+4+4*i+1}")
                e(f"v_bitop3_b32 v{vT}, v{vT}, v{Y+4+4*i+3}, s{sTAG} bitop3:0xf6")
                e(f"v_mov_b32 v{Y}, v{Y+4+4*i}")
                e(f"v_cmp_ne_u32 vcc, 0, v{vT}")
                e(f"v_mov_b32 v{Y+2}, v{Y+4+4*i+2}")
                e(f"s_cbranch_vccz L_got")
            e(f"s_add_u32 s{sCNT}, s{sCNT}, 1")
            e(f"s_cmp_lt_u32 s{sCNT}, {hex(SPIN)}")
            e(f"s_cbranch_scc1 L_poll")
            g.label("L_got")
            e(f"s_nop 0")
        g.c("sum over the 8 sources (lane bits 3..5)")
        e(f"v_add_f32_dpp v{Y}, v{Y}, v{Y} row_ror:8 row_mask:0xf bank_mask:0xf")
        e(f"v_add_f32_dpp v{Y+2}, v{Y+2}, v{Y+2} row_ror:8 row_mask:0xf bank_mask:0xf")
        e(f"v_mov_b32 v{Y+1}, v{Y}")
        e(f"v_mov_b32 v{Y+3}, v{Y+2}")
        e(f"s_nop 0")
        e(f"v_permlane16_swap_b32 v{Y}, v{Y+1}")
        e(f"v_permlane16_swap_b32 v{Y+2}, v{Y+3}")
        e(f"v_add_f32 v{Y}, v{Y}, v{Y+1}")
        e(f"v_add_f32 v{Y+2}, v{Y+2}, v{Y+3}")
        e(f"v_mov_b32 v{Y+1}, v{Y}")
        e(f"v_mov_b32 v{Y+3}, v{Y+2}")
        e(f"s_nop 0")
        e(f"v_permlane32_swap_b32 v{Y}, v{Y+1}")
        e(f"v_permlane32_swap_b32 v{Y+2}, v{Y+3}")
        e(f"v_add_f32 v{Y}, v{Y}, v{Y+1}")
        e(f"v_add_f32 v{Y+2}, v{Y+2}, v{Y+3}")
        e(f"v_cvt_pk_bf16_f32 v{Y}, v{Y}, v{Y+2}")
        e(f"s_mov_b64 exec, 0xff")
        e(f"buffer_store_dword v{Y}, v{vX+5}, s[{SO}:{SO+3}], s81 offen{outp}")
    g.label("L_exit")
    if fixed:
        g.label("L_echo")
        e("s_memrealtime s[76:77]")
        e("s_waitcnt lgkmcnt(0)")
        e("s_sub_u32 s57, s76, s64")
        e(f"s_cmp_lt_u32 s57, {fixed}")
        e("s_cbranch_scc1 L_echo")
    if stamps:
        e("s_waitcnt vmcnt(0)")
        e("s_memrealtime s[70:71]")
        e("s_waitcnt lgkmcnt(0)")
        e("s_mov_b64 exec, 1")
        for i in range(4):
            e(f"v_mov_b32 v{8+i}, s{64+2*i}")
        e(f"s_lshl_b32 s56, s2, 5")
        e(f"s_lshl_b32 s57, s3, 4")
        e(f"s_add_u32 s56, s56, s57")
        e(f"s_add_u32 s56, s56, {1<<20}")
        e(f"buffer_store_dwordx4 v[8:11], off, s[{SW}:{SW+3}], s56")
    g.label("L_end")
    e("s_endpgm")

    def emitQ():
        e(f"buffer_load_dwordx4 {vr(Y+4,4)}, v{vX+1}, s[{SW}:{SW+3}], s{sSB} offen sc1")
        e(f"buffer_load_dwordx4 {vr(Y+8,4)}, v{vX+1}, s[{SW}:{SW+3}], s{sSB} offen offset:16 sc1")
    g.label("L_evQ")
    emitQ()
    e(f"s_mov_b32 s{sCNT}, 0")
    e(f"s_branch L_v_back")
    g.label("L_retryQ")
    emitQ()
    e(f"s_add_u32 s{sCNT}, s{sCNT}, 1")
    e(f"s_cmp_lt_u32 s{sCNT}, {hex(SPIN)}")
    e(f"s_waitcnt vmcnt(0)")
    e(f"s_cbranch_scc1 L_chkQ")
    e(f"s_branch L_okQ")

    out = HEADER
    out += f"; @launch grid=(256,1,1) block=(128,1,1) lds=0\n"
    out += f""".amdgcn_target "amdgcn-amd-amdhsa--gfx950"
.text
.globl {NAME}
.p2align 8
.type {NAME},@function
{NAME}:
"""
    out += g.text()
    out += f""".section .rodata,"a"
.p2align 6
.amdhsa_kernel {NAME}
  .amdhsa_next_free_vgpr {NV}
  .amdhsa_next_free_sgpr 96
  .amdhsa_accum_offset {NV}
  .amdhsa_group_segment_fixed_size 0
  .amdhsa_kernarg_size 64
  .amdhsa_user_sgpr_count 2
  .amdhsa_user_sgpr_kernarg_segment_ptr 1
  .amdhsa_system_sgpr_workgroup_id_x 1
  .amdhsa_float_denorm_mode_32 3
.end_amdhsa_kernel
"""
    return out

if __name__ == "__main__":
    import ast
    kw = {}
    for a in sys.argv[2:]:
        k, v = a.split("=")
        try: kw[k] = ast.literal_eval(v)
        except Exception: kw[k] = v
    open(sys.argv[1], "w").write(gen(**kw))
```

```python
import sys
from gen import G, vr, HEADER, NAME

def gen(F=11, pol="nt", stamps=False, dQ=2, aslot=6, ND=4, tstamp=0, SPIN=0x40000, pre=4, R=2, rot=(3, 4, 16),
        late=True, Fpat=None, outpol="", FD=None, pf=0, noef=False):
    g = G()
    e = g.e
    SK, SV, SE, SF, SQ, SO, SW = 4, 8, 12, 16, 20, 24, 32
    sTAG, sTB, sLE = 28, 29, 31
    sLO, sHI, sOFF, sEOFF = 36, 37, 38, 39
    sT0, sT1, sT2, sT3 = 56, 57, 58, 59
    sWSL, sHEAD, sCNT, sIT = 60, 61, 62, 63
    sKV0, sTC, sROT = 72, 73, 74
    sSB, sSS, sCT, sVB = 75, 76, 77, 78
    sOUT = 80
    sNX, sLM, sFIN = 88, 89, 90
    SP, sPF = 92, 91
    vKV, vEF = 1, 2
    vT = 4
    vX = 10
    vQ = 16
    vTK = 16
    P = 20
    vA = 24
    vACC = 32
    vB = 64
    vR = 96
    NR = 16
    Y = vR + NR * 4
    NV = Y + 28
    assert F <= 14 and aslot >= F - 9 and ND % 2 == 0
    if ND == 0:
        R = 0
    NSV = 32 - ND
    LQ = 8 * ND - R
    SC0, CT0 = 0x80000, 0x90000
    polf = " " + pol if pol else ""
    outp = " " + outpol if outpol else ""

    def stamp(idx):
        if stamps:
            e(f"s_memrealtime s[{64+2*idx}:{65+2*idx}]")

    e(f"s_load_dwordx16 s[40:55], s[0:1], 0")
    e(f"s_cmp_ge_u32 s2, 256")
    e(f"s_cbranch_scc1 L_end")
    stamp(0)
    e(f"v_and_b32 v{vT}, 15, v0                ; c")
    e(f"v_bfe_u32 v{vT+1}, v0, 4, 2            ; g")
    e(f"v_lshrrev_b32 v{vT+2}, 6, v0           ; h")
    e(f"v_lshlrev_b32 v{vX}, 4, v{vT}")
    e(f"v_lshl_add_u32 v{vX}, v{vT+2}, 8, v{vX}      ; h*256 + c*16")
    e(f"v_lshl_add_u32 v{vKV}, v{vT+1}, 12, v{vX}")
    e(f"v_lshlrev_b32 v{vEF}, 4, v{vT+1}")
    e(f"v_lshl_add_u32 v{vEF}, v{vT}, 14, v{vEF}     ; c*16384 + g*16")
    e(f"s_mov_b32 s{SK+2}, 0x8000000")
    e(f"s_mov_b32 s{SK+3}, 0x20000")
    e(f"s_mov_b32 s{SE+2}, 0x40000")
    e(f"s_mov_b32 s{SE+3}, 0x20000")
    g.c("rows of this workgroup: address bit 15 = slice bit 0, bits 20..21 = slice bits 1..2, bits 22.. = head")
    e(f"s_lshr_b32 s{sKV0}, s2, 1")
    e(f"s_lshl_b32 s{sKV0}, s{sKV0}, 20")
    e(f"s_and_b32 s{sT0}, s2, 1")
    e(f"s_lshl_b32 s{sT0}, s{sT0}, 15")
    e(f"s_or_b32 s{sKV0}, s{sKV0}, s{sT0}")
    if rot:
        e(f"s_bfe_u32 s{sROT}, s2, {hex(rot[1] << 16 | rot[0])}")
        e(f"s_lshl_b32 s{sROT}, s{sROT}, {rot[2]}")
        e(f"s_or_b32 s{sKV0}, s{sKV0}, s{sROT}")
    e(f"s_mov_b32 s{sTC}, 0")
    e(f"s_mov_b32 s{sOFF}, s{sKV0}")
    e(f"s_bfe_u32 s{sEOFF}, s{sOFF}, 0xe0008")
    e(f"s_waitcnt lgkmcnt(0)")
    e(f"s_mov_b64 s[{SK}:{SK+1}], s[42:43]")
    e(f"s_mov_b64 s[{SE}:{SE+1}], s[46:47]")

    DYN0 = 32 + NSV
    drains = []
    def request(T):
        e(f"v_mov_b32 v{vTK+(T&1)}, 1")
        e(f"s_mov_b64 exec, 1")
        g.vmem(f"buffer_atomic_add v{vTK+(T&1)}, off, s[{SW}:{SW+3}], s{sCT} sc0", f"R{T}")
        e(f"s_mov_b64 exec, -1")

    def issue(m, n=None):
        T, k = m >> 3, m & 7
        ph = int(T >= 32)
        if k == 0 and m > 0:
            if T < DYN0:
                if T == 32:
                    e(f"s_mov_b32 s{sTC}, 0")
                else:
                    e(f"s_add_u32 s{sTC}, s{sTC}, {'0x4000' if T & 1 else '0xc000'}")
                e(f"s_xor_b32 s{sOFF}, s{sTC}, s{sKV0}")
            else:
                g.wait({f"R{T}"})
                e(f"v_readfirstlane_b32 s{sT0}, v{vTK+(T&1)}")
                e(f"s_sub_u32 s{sT0}, s{sT0}, s{sTB}")
                e(f"s_cmp_ge_u32 s{sT0}, {LQ}")
                e(f"s_cselect_b32 s{sT0}, s{sNX}, s{sT0}")
                e(f"s_addc_u32 s{sNX}, s{sNX}, 0")
                e(f"s_cmp_ge_u32 s{sT0}, s{sLM}")
                lab = f"L_drain{len(drains)}"
                drains.append((lab, n, m, list(g.vm)))
                e(f"s_cbranch_scc1 {lab}")
                e(f"s_and_b32 s{sT1}, s{sT0}, 3")
                e(f"s_lshl_b32 s{sOFF}, s{sT1}, 14")
                e(f"s_bfe_u32 s{sT1}, s{sT0}, 0x20002")
                e(f"s_lshl_b32 s{sT1}, s{sT1}, 20")
                e(f"s_or_b32 s{sOFF}, s{sOFF}, s{sT1}")
                if ND > 2:
                    e(f"s_lshr_b32 s{sT0}, s{sT0}, 4")
                    e(f"s_add_u32 s{sT0}, s{sT0}, {NSV//2}")
                    e(f"s_lshl_b32 s{sT0}, s{sT0}, 16")
                    e(f"s_or_b32 s{sOFF}, s{sOFF}, s{sT0}")
                e(f"s_xor_b32 s{sOFF}, s{sOFF}, s{sVB}")
            e(f"s_bfe_u32 s{sEOFF}, s{sOFF}, 0xe0008")
            if pf and not (T & 1) and T < DYN0 and n is not None:
                e(f"s_add_u32 s{sT0}, s{sTC}, {pf << 16}")
                e(f"s_and_b32 s{sT0}, s{sT0}, 0xf0000")
                e(f"s_lshr_b32 s{sT0}, s{sT0}, 8")
                e(f"s_or_b32 s{sT0}, s{sT0}, s{sPF}")
                e(f"s_mov_b64 exec, 1")
                e(f"buffer_load_dword v{vX+4}, off, s[{SP}:{SP+3}], s{sT0}")
                e(f"s_mov_b64 exec, -1")
            if ND and T + 2 >= DYN0:
                request(T + 2)
        if k == aslot and not noef:
            srd = SF if ph else SE
            g.vmem(f"buffer_load_dwordx4 {vr(vA+(T&1)*4,4)}, v{vEF}, s[{srd}:{srd+3}], s{sEOFF} offen", f"A{T}")
        srd = SV if ph else SK
        r = vR + (m % NR) * 4
        g.vmem(f"buffer_load_dwordx4 {vr(r,4)}, v{vKV}, s[{srd}:{srd+3}], s{sOFF} offen offset:{k*512}{polf}", f"L{m}")

    zero_tiles = set()
    def consume(n):
        if not (n & 1):
            return
        T, q = n >> 3, (n >> 1) & 3
        x0 = vR + ((n - 1) % NR) * 4
        x1 = vR + (n % NR) * 4
        def perm(i):
            sel = sHI if (i & 1) else sLO
            e(f"v_perm_b32 v{vB+i*4+q}, v{x1+(i>>1)}, v{x0+(i>>1)}, s{sel}")
        def mfma(i):
            acc = vACC + i * 4
            cin = "0" if T in zero_tiles else vr(acc, 4)
            e(f"v_mfma_f32_16x16x32_bf16 {vr(acc,4)}, {vr(vA+(T&1)*4,4)}, {vr(vB+i*4,4)}, {cin}")
        if q != 3:
            for i in range(8):
                perm(i)
            return
        perm(0); perm(1); perm(2)
        for i in range(8):
            mfma(i)
            if i + 3 < 8:
                perm(i + 3)

    def slot(n):
        need = {f"L{n}"}
        if Fpat and Fpat[n % len(Fpat)]:
            need.add(f"L{n + Fpat[n % len(Fpat)]}")
        g.wait(need)
        m = n + F
        if (m & 7) == aslot and (m >> 3) - 2 >= (n >> 3):
            assert (m >> 3) - 2 == (n >> 3) and (n & 7) == 7, (n, m)
            consume(n)
            issue(m, n)
        else:
            issue(m, n)
            consume(n)

    def body(it, fills=()):
        st = [[list(gr), sl, sum(map(len, gr)), 0] for gr, sl in fills]
        for n in range(it * 16, it * 16 + 16):
            slot(n)
            for f in st:
                if (n & 15) in f[1]:
                    want = f[2] * (f[1].index(n & 15) + 1) / len(f[1])
                    while f[0] and f[3] < want:
                        grp = f[0].pop(0)
                        f[3] += len(grp)
                        for ins in grp:
                            e(ins)
        assert not any(f[0] for f in st)

    for n in range(F):
        issue(n)
    if pf:
        assert not rot
        e(f"s_bitcmp1_b32 s2, 7")
        e(f"s_cselect_b64 s[{SP}:{SP+1}], s[48:49], s[46:47]")
        e(f"s_mov_b32 s{SP+2}, 0x40000")
        e(f"s_mov_b32 s{SP+3}, 0x20000")
        e(f"s_bfe_u32 s{sT0}, s2, 0x40003")
        e(f"s_lshl_b32 s{sT0}, s{sT0}, 14")
        e(f"s_bfe_u32 s{sPF}, s{sKV0}, 0xe0008")
        e(f"s_or_b32 s{sPF}, s{sPF}, s{sT0}")
    e(f"s_mov_b32 s{sLO}, 0x05040100")
    e(f"s_mov_b32 s{sHI}, 0x07060302")
    for r in range(0, 32, 2):
        e(f"v_mov_b64 {vr(vACC+r,2)}, 0")

    su = []
    su.append([f"v_readfirstlane_b32 s3, v{vT+2}",
               f"s_mov_b64 s[{SV}:{SV+1}], s[44:45]", f"s_mov_b32 s{SV+2}, 0x8000000", f"s_mov_b32 s{SV+3}, 0x20000",
               f"s_mov_b64 s[{SQ}:{SQ+1}], s[40:41]", f"s_mov_b32 s{SQ+2}, 0x4000", f"s_mov_b32 s{SQ+3}, 0x20000",
               f"s_lshr_b32 s{sHEAD}, s2, 3", f"s_lshl_b32 s{sOUT}, s{sHEAD}, 9",
               f"buffer_load_dwordx4 {vr(vQ,4)}, v{vX}, s[{SQ}:{SQ+3}], s{sOUT} offen"])
    su.append([f"s_mov_b64 s[{SW}:{SW+1}], s[54:55]", f"s_mov_b32 s{SW+2}, 0x20000000", f"s_mov_b32 s{SW+3}, 0x20000",
               f"s_lshl_b32 s{sT2}, s{sHEAD}, 10", f"s_add_u32 s{sT2}, s{sT2}, {hex(CT0)}",
               f"v_and_b32 v{vT+3}, 1, v0", f"v_lshlrev_b32 v{vT+3}, 9, v{vT+3}", f"s_mov_b64 exec, 3",
               f"buffer_load_dword v{vT+5}, v{vT+3}, s[{SW}:{SW+3}], s{sT2} offen sc1",
               f"s_mov_b64 exec, -1"])
    su.append([f"s_mov_b64 s[{SF}:{SF+1}], s[48:49]", f"s_mov_b32 s{SF+2}, 0x40000", f"s_mov_b32 s{SF+3}, 0x20000",
               f"s_lshl_b32 s{sT3}, s3, 9", f"s_add_u32 s{sCT}, s{sT2}, s{sT3}"])
    su2 = []
    su2.append([f"s_mov_b64 s[{SO}:{SO+1}], s[50:51]", f"s_mov_b32 s{SO+2}, 0x4000", f"s_mov_b32 s{SO+3}, 0x20000",
                f"s_mov_b32 s{sLE}, 0x3db8aa3b          ; log2(e)/16"])
    vb = [f"s_lshl_b32 s{sVB}, s{sHEAD}, 22"]
    if rot:
        vb.append(f"s_or_b32 s{sVB}, s{sVB}, s{sROT}")
    if ND == 2:
        vb.append(f"s_xor_b32 s{sVB}, s{sVB}, 0xf0000")
    su2.append(vb)
    su2.append([f"s_lshl_b32 s{sWSL}, s2, 11",
                f"s_lshl_b32 s{sSS}, s2, 8", f"s_add_u32 s{sSS}, s{sSS}, {hex(SC0)}",
                f"s_lshl_b32 s{sSB}, s{sHEAD}, 11", f"s_add_u32 s{sSB}, s{sSB}, {hex(SC0)}"])
    su2.append([f"v_lshlrev_b32 v{vX+1}, 7, v{vT}",
                f"v_lshl_add_u32 v{vX+1}, v{vT+1}, 5, v{vX+1}"])
    su2.append([f"v_lshlrev_b32 v{vX+2}, 7, v{vT+2}", f"v_lshl_add_u32 v{vX+2}, v{vT+1}, 5, v{vX+2}",
                f"v_lshl_add_u32 v{vX+2}, v{vT}, 4, v{vX+2}"])
    su2.append([f"v_lshlrev_b32 v{vX+3}, 4, v0",
                f"v_lshl_add_u32 v{vX+5}, v{vT+1}, 2, v{vX}"])
    su2.append([f"s_lshl_b32 s{sT3}, s3, 2", f"s_add_u32 s{sT3}, s{sT3}, s{sHEAD}", f"s_xor_b32 s{sT3}, s{sT3}, s2",
                f"s_and_b32 s{sFIN}, s{sT3}, 7",
                f"s_mov_b32 s{sNX}, {LQ}", f"s_cmp_eq_u32 s{sFIN}, 0", f"s_cselect_b32 s{sLM}, {8*ND}, {LQ}"])
    su2.append([f"s_xor_b32 s{sOUT+k}, s{sWSL}, {k << 11}" for k in range(1, 5)])
    su2.append([f"s_xor_b32 s{sOUT+k}, s{sWSL}, {k << 11}" for k in range(5, 8)])
    if not late:
        for grp in su + su2:
            for ins in grp:
                e(ins)

    def shift(vm, dit):
        return [f"{t[0]}{int(t[1:]) + dit*(16 if t[0] == 'L' else 2)}" for t in vm]
    def loop(name, first, last, evs):
        e(f"s_mov_b32 s{sIT}, {first}")
        entry = list(g.vm)
        g.label(f"L_{name}")
        body(first)
        assert g.vm == shift(entry, 1), (g.vm, entry)
        for it, lab in evs:
            assert first <= it <= last
            e(f"s_cmp_eq_u32 s{sIT}, {it}")
            e(f"s_cbranch_scc1 L_{lab}")
        g.label(f"L_{name}_back")
        e(f"s_add_u32 s{sIT}, s{sIT}, 1")
        e(f"s_cmp_le_u32 s{sIT}, {last}")
        e(f"s_cbranch_scc1 L_{name}")
        g.vm = shift(entry, last - first + 1)

    if Fpat and Fpat[-1]:
        raise SystemExit("last entry of Fpat must be 0")
    loop("k", 0, 14, [])
    g.c("requests outside the window count only make the counted waits stricter")
    if late:
        assert 16 - F >= 2
        body(15, [(su[:1], [0]), (su[1:2], [1]), (su[2:], [2]), (su2, [4, 6, 8, 10, 12])])
    else:
        body(15)
    if tstamp == 0:
        stamp(2)
    S4 = P
    sc = []
    for i in range(8):
        qr = vQ + (i >> 1)
        grp = [f"v_and_b32 v{vT}, 0xffff0000, v{qr}" if i & 1 else f"v_lshlrev_b32 v{vT}, 16, v{qr}"]
        for r in range(4):
            grp.append(f"{'v_fmac_f32' if i else 'v_mul_f32'} v{S4+r}, v{vT}, v{vACC+i*4+r}")
        sc.append(grp)
    sc.append([f"v_readlane_b32 s{sTAG}, v{vT+5}, 0", f"v_readlane_b32 s{sTB}, v{vT+5}, s3"])
    sc2 = [[f"s_xor_b32 s{sTAG}, s{sTAG}, 0x5bd1e995"]]
    for sh in (8, 4, 2, 1):
        sc2.append([f"v_add_f32_dpp v{S4+r}, v{S4+r}, v{S4+r} row_ror:{sh} row_mask:0xf bank_mask:0xf" for r in range(4)])
    sc2.append([f"s_mov_b32 vcc_lo, 0x00020002", f"s_mov_b32 vcc_hi, 0x00020002",
                f"v_cndmask_b32 v{Y}, v{S4}, v{S4+2}, vcc", f"v_mov_b32 v{Y+1}, s{sTAG}",
                f"v_cndmask_b32 v{Y+2}, v{S4+1}, v{S4+3}, vcc", f"v_mov_b32 v{Y+3}, s{sTAG}"])
    sc2.append([f"s_mov_b32 exec_lo, 0x00030003", f"s_mov_b32 exec_hi, 0x00030003",
                f"buffer_store_dwordx4 {vr(Y,4)}, v{vX+2}, s[{SW}:{SW+3}], s{sSS} offen sc1",
                f"s_mov_b64 exec, -1"])
    g.c("iteration 16 also computes and publishes the partial scores of this wave")
    zero_tiles.add(32)
    body(16, [(sc, [0, 2, 4, 6]), (sc2, [8, 10, 12])])

    def fetch(tag=None):
        for k in range(1, 8):
            ins = f"buffer_load_dwordx4 {vr(Y+4*(k-1),4)}, v{vX+3}, s[{SW}:{SW+3}], s{sOUT+k} offen sc1"
            if tag:
                g.vmem(ins, tag)
            else:
                e(ins)
    fdr = {}
    def drain(n, m):
        for x in range(n, m):
            if x == m - pre:
                e(f"s_cmp_eq_u32 s{sFIN}, 0")
                e(f"s_cbranch_scc1 L_fdrain{m & 15}")
                fdr[m & 15] = (x, m, list(g.vm))
            if x & 1:
                g.wait({f"L{x}"})
                consume(x)
    def check(regs):
        e(f"v_xor_b32 v{vT}, s{sTAG}, v{regs[0]}")
        e(f"v_xor_b32 v{vT+1}, s{sTAG}, v{regs[1]}")
        for i, r in enumerate(regs[2:]):
            e(f"v_bitop3_b32 v{vT+(i&1)}, v{vT+(i&1)}, v{r}, s{sTAG} bitop3:0xf6")
        e(f"v_or_b32 v{vT}, v{vT}, v{vT+1}")
        e(f"v_cmp_ne_u32 vcc, 0, v{vT}")

    lastplain = 17
    while ((lastplain + 1) * 16 + 15 + F) >> 3 < DYN0 - 2:
        lastplain += 1
    assert dQ >= 1
    loop("v", 17, lastplain, [(lastplain - dQ, "evQ")])
    if tstamp == 3:
        stamp(2)
    g.c("the scores of all 16 waves of this head were requested more than one window ago")
    g.label("L_chkQ")
    check([Y + 5, Y + 7, Y + 9, Y + 11])
    e(f"s_cbranch_vccnz L_retryQ")
    g.label("L_okQ")
    sm = []
    sm.append([f"v_add_f32_dpp v{P+r}, v{Y+4+2*r}, v{Y+4+2*r} row_ror:8 row_mask:0xf bank_mask:0xf" for r in range(4)])
    for sh in (4, 2, 1):
        sm.append([f"v_add_f32_dpp v{P+r}, v{P+r}, v{P+r} row_ror:{sh} row_mask:0xf bank_mask:0xf" for r in range(4)])
    sm.append([f"v_max3_f32 v{vT}, v{P}, v{P+1}, v{P+2}", f"v_max_f32 v{vT}, v{vT}, v{P+3}",
               f"v_mov_b32 v{vT+1}, v{vT}", "s_nop 1", f"v_permlane32_swap_b32 v{vT}, v{vT+1}",
               f"v_max_f32 v{vT}, v{vT}, v{vT+1}"])
    sm.append([f"v_mov_b32 v{vT+1}, v{vT}", "s_nop 1", f"v_permlane16_swap_b32 v{vT}, v{vT+1}",
               f"v_max_f32 v{vT}, v{vT}, v{vT+1}"])
    sm.append([f"v_sub_f32 v{P+r}, v{P+r}, v{vT}" for r in range(4)])
    sm.append([f"v_mul_f32 v{P+r}, s{sLE}, v{P+r}" for r in range(4)])
    sm.append([f"v_exp_f32 v{P+r}, v{P+r}" for r in range(4)] + ["s_nop 0"])
    sm.append([f"v_add_f32 v{vT}, v{P}, v{P+1}", f"v_add_f32 v{vT+1}, v{P+2}, v{P+3}", f"v_add_f32 v{vT}, v{vT}, v{vT+1}",
               f"v_mov_b32 v{vT+1}, v{vT}", "s_nop 1", f"v_permlane32_swap_b32 v{vT}, v{vT+1}",
               f"v_add_f32 v{vT}, v{vT}, v{vT+1}"])
    sm.append([f"v_mov_b32 v{vT+1}, v{vT}", "s_nop 1", f"v_permlane16_swap_b32 v{vT}, v{vT+1}",
               f"v_add_f32 v{vT}, v{vT}, v{vT+1}", f"v_rcp_f32 v{vT}, v{vT}", "s_nop 0"])
    sm.append([f"v_mul_f32 v{P+r}, v{P+r}, v{vT}" for r in range(4)])
    it = lastplain + 1
    g.c("softmax over the 16 scores (4 registers x 4 lane groups), spread over this iteration")
    body(it, [(sm, [0, 2, 4, 6, 8, 10, 12, 14])])
    assert not drains
    it += 1
    if ND:
        while ((it * 16 + F + 7) >> 3) < DYN0 + 1:
            body(it)
            it += 1
        entry = list(g.vm)
        g.label("L_dyn")
        body(it)
        assert g.vm == shift(entry, 1), (g.vm, entry)
        e(f"s_branch L_dyn")
    else:
        n = it * 16
        while n + F < 512:
            slot(n)
            n += 1
        drains.append(("L_drain0", n, 512, list(g.vm)))
        e(f"s_branch L_drain0")
    seen = {}
    for lab, n, m, vm in drains:
        g.vm = list(vm)
        start = len(g.lines)
        drain(n, m)
        code = g.lines[start:]
        del g.lines[start:]
        seen.setdefault("\n".join(code), []).append(lab)
    for par, (x0, m, vm) in fdr.items():
        g.vm = list(vm)
        g.label(f"L_fdrain{par}")
        fetch("Y")
        for x in range(x0, m):
            if x & 1:
                g.wait({f"L{x}"})
                consume(x)
        e("s_branch L_epi")
    keys = list(seen)
    for i, key in enumerate(keys):
        for lab in seen[key]:
            g.label(lab)
        g.lines.append(key)
        if i + 1 < len(keys):
            e("s_branch L_epi")

    ytags = [Y + 1 + 2 * i for i in range(14)]
    g.label("L_epi")
    t = vR
    e(f"v_mov_b32 v{t+9}, s{sTAG}")
    for i in range(8):
        a = vACC + i * 4
        e(f"v_mul_f32 v{t+i}, v{P}, v{a}")
        e(f"v_fmac_f32 v{t+i}, v{P+1}, v{a+1}")
        e(f"v_fmac_f32 v{t+i}, v{P+2}, v{a+2}")
        e(f"v_fmac_f32 v{t+i}, v{P+3}, v{a+3}")
    e(f"v_mov_b32 v{t+11}, s{sTAG}")
    e(f"s_mov_b32 s{sCNT}, 0")
    for m in range(4):
        e(f"v_permlane32_swap_b32 v{t+m}, v{t+m+4}")
    for m in range(4):
        e(f"v_add_f32 v{t+m}, v{t+m}, v{t+m+4}")
    e(f"s_cmp_eq_u32 s{sFIN}, 0")
    e("s_nop 0")
    for m in range(2):
        e(f"v_permlane16_swap_b32 v{t+m}, v{t+m+2}")
    for m in range(2):
        e(f"v_add_f32 v{t+8+2*m}, v{t+m}, v{t+m+2}")
    stamp(1)
    e(f"s_cbranch_scc1 L_look")
    e(f"buffer_store_dwordx4 {vr(t+8,4)}, v{vX+3}, s[{SW}:{SW+3}], s{sWSL} offen sc1")
    e(f"s_branch L_exit" if stamps else "s_endpgm")
    g.label("L_again")
    fetch()
    g.label("L_look")
    e(f"s_add_u32 s{sCNT}, s{sCNT}, 1")
    e(f"s_cmp_ge_u32 s{sCNT}, {hex(SPIN)}")
    e(f"s_waitcnt vmcnt(0)")
    check(ytags)
    e(f"s_cbranch_scc1 L_fin")
    e(f"s_cbranch_vccnz L_again")
    g.label("L_fin")
    y = lambda k, m: Y + 4 * (k - 1) + 2 * m
    for m in range(2):
        e(f"v_add_f32 v{y(2,m)}, v{y(2,m)}, v{y(3,m)}")
        e(f"v_add_f32 v{y(4,m)}, v{y(4,m)}, v{y(5,m)}")
        e(f"v_add_f32 v{y(6,m)}, v{y(6,m)}, v{y(7,m)}")
        e(f"v_add_f32 v{t+m}, v{t+8+2*m}, v{y(1,m)}")
    for m in range(2):
        e(f"v_add_f32 v{y(4,m)}, v{y(4,m)}, v{y(6,m)}")
        e(f"v_add_f32 v{t+m}, v{t+m}, v{y(2,m)}")
    for m in range(2):
        e(f"v_add_f32 v{t+m}, v{t+m}, v{y(4,m)}")
    e(f"v_cvt_pk_bf16_f32 v{t}, v{t}, v{t+1}")
    e(f"buffer_store_dword v{t}, v{vX+5}, s[{SO}:{SO+3}], s{sOUT} offen{outp}")
    if ND == 0:
        g.c("change the word the tag is derived from, for the next launch")
        e(f"s_add_u32 s{sTB}, s{sTB}, 1")
        e(f"v_mov_b32 v{t+2}, s{sTB}")
        e(f"s_mov_b64 exec, 1")
        e(f"buffer_store_dword v{t+2}, off, s[{SW}:{SW+3}], s{sCT}")
    g.label("L_exit")
    if stamps:
        e("s_waitcnt vmcnt(0)")
        e("s_memrealtime s[70:71]")
        e("s_waitcnt lgkmcnt(0)")
        e("s_mov_b64 exec, 1")
        for i in range(4):
            e(f"v_mov_b32 v{8+i}, s{64+2*i}")
        e(f"s_lshl_b32 s56, s2, 5")
        e(f"s_lshl_b32 s57, s3, 4")
        e(f"s_add_u32 s56, s56, s57")
        e(f"s_add_u32 s56, s56, {1<<20}")
        e(f"buffer_store_dwordx4 v[8:11], off, s[{SW}:{SW+3}], s56")
    g.label("L_end")
    e("s_endpgm")

    def emitQ():
        e(f"buffer_load_dwordx4 {vr(Y+4,4)}, v{vX+1}, s[{SW}:{SW+3}], s{sSB} offen sc1")
        e(f"buffer_load_dwordx4 {vr(Y+8,4)}, v{vX+1}, s[{SW}:{SW+3}], s{sSB} offen offset:16 sc1")
    g.label("L_evQ")
    emitQ()
    e(f"s_mov_b32 s{sCNT}, 0")
    e(f"s_branch L_v_back")
    g.label("L_retryQ")
    emitQ()
    e(f"s_add_u32 s{sCNT}, s{sCNT}, 1")
    e(f"s_cmp_lt_u32 s{sCNT}, {hex(SPIN)}")
    e(f"s_waitcnt vmcnt(0)")
    e(f"s_cbranch_scc1 L_chkQ")
    e(f"s_branch L_okQ")

    out = HEADER
    out += f"; @launch grid=(256,1,1) block=(128,1,1) lds=0\n"
    out += f""".amdgcn_target "amdgcn-amd-amdhsa--gfx950"
.text
.globl {NAME}
.p2align 8
.type {NAME},@function
{NAME}:
"""
    out += g.text()
    out += f""".section .rodata,"a"
.p2align 6
.amdhsa_kernel {NAME}
  .amdhsa_next_free_vgpr {NV}
  .amdhsa_next_free_sgpr 96
  .amdhsa_accum_offset {NV}
  .amdhsa_group_segment_fixed_size 0
  .amdhsa_kernarg_size 64
  .amdhsa_user_sgpr_count 2
  .amdhsa_user_sgpr_kernarg_segment_ptr 1
  .amdhsa_system_sgpr_workgroup_id_x 1
  .amdhsa_float_denorm_mode_32 3
.end_amdhsa_kernel
"""
    return out

if __name__ == "__main__":
    import ast
    kw = {}
    for a in sys.argv[2:]:
        k, v = a.split("=")
        try: kw[k] = ast.literal_eval(v)
        except Exception: kw[k] = v
    open(sys.argv[1], "w").write(gen(**kw))
```

```python
import sys
from gen import G, vr, HEADER, NAME

DOC = """;
;
; A tile is 32 rows: 8 x buffer_load_dwordx4 (lane group g = rows 8g..8g+7, lane c = 16-byte column chunk), transposed
; Hand-offs go through d_ws as {value, tag} pairs (write-through stores, L1-bypassing loads).  The tag and the first
"""

def gen(F=11, pol="nt", stamps=False, dQ=2, aslot=6, ND=4, SPIN=0x200000, pre=4, R=2, hoist=True, track=True, cpf=1):
    g = G()
    e = g.e
    SK, SV, SE, SF, SQ, SO, SW = 4, 8, 12, 16, 20, 24, 32
    sTAG, sTB, sLE = 28, 29, 31
    sLO, sHI, sOFF, sEOFF = 36, 37, 38, 39
    sT0, sT1, sT2, sT3 = 56, 57, 58, 59
    sWSL, sHEAD, sCNT, sIT = 60, 61, 62, 63
    sKV0, sTC, sROT = 72, 73, 74
    sSB, sSS, sCT, sVB = 75, 76, 77, 78
    sOUT = 80
    sNX, sLM, sFIN = 88, 89, 90
    vKV, vEF = 1, 2
    vT = 4
    vX = 10
    vQ = 16
    vTK = 16
    P = 20
    vA = 24
    vACC = 32
    vB = 64
    vR = 96
    NR = 16
    Y = vR + NR * 4
    NV = Y + 28
    assert 9 <= F <= 13 and aslot >= F - 8 and ND % 2 == 0 and ND > 2
    NSV = 32 - ND
    LQ = 8 * ND - R
    SC0, CT0 = 0x80000, 0x90000
    polf = " " + pol if pol else ""

    def stamp(idx):
        if stamps:
            e(f"s_memrealtime s[{64+2*idx}:{65+2*idx}]")

    e(f"s_load_dwordx16 s[40:55], s[0:1], 0")
    e(f"s_cmp_ge_u32 s2, 256")
    e(f"s_cbranch_scc1 L_end")
    stamp(0)
    if cpf:
        g.c("pull the kernel's own code into L2 (three 128-byte lines per workgroup); the value is not used")
        e(f"s_getpc_b64 s[94:95]")
        g.label("L_pc")
        e(f"s_lshr_b32 s{sT0}, s2, 3")
        e(f"s_mul_i32 s{sT0}, s{sT0}, 3")
        e(f"v_add_lshl_u32 v{Y+24}, v0, s{sT0}, 7")
        e(f"v_min_u32 v{Y+24}, L_last - L_pc, v{Y+24}")
        e(f"v_mov_b32 v{Y+25}, 0")
        e(f"v_lshl_add_u64 {vr(Y+24,2)}, {vr(Y+24,2)}, 0, s[94:95]")
        e(f"s_mov_b64 exec, 7")
        e(f"global_load_dword v{Y+26}, {vr(Y+24,2)}, off")
        e(f"s_mov_b64 exec, -1")
    e(f"v_and_b32 v{vT}, 15, v0                ; c")
    e(f"v_bfe_u32 v{vT+1}, v0, 4, 2            ; g")
    e(f"v_lshrrev_b32 v{vT+2}, 6, v0           ; h")
    e(f"v_lshlrev_b32 v{vX}, 4, v{vT}")
    e(f"v_lshl_add_u32 v{vX}, v{vT+2}, 8, v{vX}      ; h*256 + c*16")
    e(f"v_lshl_add_u32 v{vKV}, v{vT+1}, 12, v{vX}    ; + g*4096")
    e(f"v_lshlrev_b32 v{vEF}, 4, v{vT+1}")
    e(f"v_lshl_add_u32 v{vEF}, v{vT}, 14, v{vEF}     ; c*16384 + g*16")
    e(f"s_mov_b32 s{SK+2}, 0x8000000")
    e(f"s_mov_b32 s{SK+3}, 0x20000")
    e(f"s_mov_b32 s{SE+2}, 0x40000")
    e(f"s_mov_b32 s{SE+3}, 0x20000")
    g.c("byte offset of a tile: bit 15 = slice bit 0, bits 20..21 = slice bits 1..2, bits 22.. = head,")
    g.c("bits 14, 16..19 = tile number (bits 16..19 XORed with the head: heads walk their tiles in different orders)")
    e(f"s_lshr_b32 s{sKV0}, s2, 1")
    e(f"s_lshl_b32 s{sKV0}, s{sKV0}, 20")
    e(f"s_and_b32 s{sT0}, s2, 1")
    e(f"s_lshl_b32 s{sT0}, s{sT0}, 15")
    e(f"s_or_b32 s{sKV0}, s{sKV0}, s{sT0}")
    e(f"s_bfe_u32 s{sROT}, s2, 0x40003")
    e(f"s_lshl_b32 s{sROT}, s{sROT}, 16")
    e(f"s_or_b32 s{sKV0}, s{sKV0}, s{sROT}")
    e(f"s_mov_b32 s{sTC}, 0")
    e(f"s_mov_b32 s{sOFF}, s{sKV0}")
    e(f"s_bfe_u32 s{sEOFF}, s{sOFF}, 0xe0008")
    e(f"s_waitcnt lgkmcnt(0)")
    e(f"s_mov_b64 s[{SK}:{SK+1}], s[42:43]")
    e(f"s_mov_b64 s[{SE}:{SE+1}], s[46:47]")

    DYN0 = 32 + NSV
    drains = []
    def request(T):
        e(f"v_mov_b32 v{vTK+(T&1)}, 1")
        e(f"s_mov_b64 exec, 1")
        g.vmem(f"buffer_atomic_add v{vTK+(T&1)}, off, s[{SW}:{SW+3}], s{sCT} sc0", f"R{T}")
        e(f"s_mov_b64 exec, -1")

    def boundary(T, n):
        if T < DYN0:
            if T == 32:
                e(f"s_mov_b32 s{sTC}, 0")
            else:
                e(f"s_add_u32 s{sTC}, s{sTC}, {'0x4000' if T & 1 else '0xc000'}")
            e(f"s_xor_b32 s{sOFF}, s{sTC}, s{sKV0}")
        else:
            g.wait({f"R{T}"})
            e(f"v_readfirstlane_b32 s{sT0}, v{vTK+(T&1)}")
            e(f"s_sub_u32 s{sT0}, s{sT0}, s{sTB}")
            e(f"s_cmp_ge_u32 s{sT0}, {LQ}")
            e(f"s_cselect_b32 s{sT0}, s{sNX}, s{sT0}")
            e(f"s_addc_u32 s{sNX}, s{sNX}, 0")
            e(f"s_cmp_ge_u32 s{sT0}, s{sLM}")
            lab = f"L_drain{len(drains)}"
            drains.append((lab, n, T * 8, list(g.vm)))
            e(f"s_cbranch_scc1 {lab}")
            e(f"s_and_b32 s{sT1}, s{sT0}, 3")
            e(f"s_lshl_b32 s{sOFF}, s{sT1}, 14")
            e(f"s_bfe_u32 s{sT1}, s{sT0}, 0x20002")
            e(f"s_lshl_b32 s{sT1}, s{sT1}, 20")
            e(f"s_or_b32 s{sOFF}, s{sOFF}, s{sT1}")
            e(f"s_lshr_b32 s{sT0}, s{sT0}, 4")
            e(f"s_add_u32 s{sT0}, s{sT0}, {NSV//2}")
            e(f"s_lshl_b32 s{sT0}, s{sT0}, 16")
            e(f"s_or_b32 s{sOFF}, s{sOFF}, s{sT0}")
            e(f"s_xor_b32 s{sOFF}, s{sOFF}, s{sVB}")
        e(f"s_bfe_u32 s{sEOFF}, s{sOFF}, 0xe0008")
        if T + 2 >= DYN0:
            request(T + 2)

    def issue(m, n=None):
        T, k = m >> 3, m & 7
        ph = int(T >= 32)
        if k == 0 and m > 0 and not hoist:
            boundary(T, n)
        if k == aslot:
            srd = SF if ph else SE
            g.vmem(f"buffer_load_dwordx4 {vr(vA+(T&1)*4,4)}, v{vEF}, s[{srd}:{srd+3}], s{sEOFF} offen", f"A{T}")
        srd = SV if ph else SK
        r = vR + (m % NR) * 4
        g.vmem(f"buffer_load_dwordx4 {vr(r,4)}, v{vKV}, s[{srd}:{srd+3}], s{sOFF} offen offset:{k*512}{polf}", f"L{m}")
        if k == 7 and hoist:
            boundary(T + 1, n)

    zero_tiles = set()
    def consume(n):
        if not (n & 1):
            return
        T, q = n >> 3, (n >> 1) & 3
        x0 = vR + ((n - 1) % NR) * 4
        x1 = vR + (n % NR) * 4
        def perm(i):
            sel = sHI if (i & 1) else sLO
            e(f"v_perm_b32 v{vB+i*4+q}, v{x1+(i>>1)}, v{x0+(i>>1)}, s{sel}")
        def mfma(i):
            acc = vACC + i * 4
            cin = "0" if T in zero_tiles else vr(acc, 4)
            e(f"v_mfma_f32_16x16x32_bf16 {vr(acc,4)}, {vr(vA+(T&1)*4,4)}, {vr(vB+i*4,4)}, {cin}")
        if q != 3:
            for i in range(8):
                perm(i)
            return
        perm(0); perm(1); perm(2)
        for i in range(8):
            mfma(i)
            if i + 3 < 8:
                perm(i + 3)

    def body(it, fills=()):
        st = [[list(gr), sl, sum(map(len, gr)), 0] for gr, sl in fills]
        for n in range(it * 16, it * 16 + 16):
            g.wait({f"L{n}"})
            issue(n + F, n)
            consume(n)
            for f in st:
                if (n & 15) in f[1]:
                    want = f[2] * (f[1].index(n & 15) + 1) / len(f[1])
                    while f[0] and f[3] < want:
                        grp = f[0].pop(0)
                        f[3] += len(grp)
                        for ins in grp:
                            if ins.startswith("buffer_load") and track:
                                g.vmem(ins, "X0")
                            else:
                                e(ins)
        assert not any(f[0] for f in st)

    for n in range(F):
        issue(n)
    e(f"s_mov_b32 s{sLO}, 0x05040100")
    e(f"s_mov_b32 s{sHI}, 0x07060302")
    for r in range(0, 32, 2):
        e(f"v_mov_b64 {vr(vACC+r,2)}, 0")

    su = []
    su.append([f"v_readfirstlane_b32 s3, v{vT+2}",
               f"s_mov_b64 s[{SV}:{SV+1}], s[44:45]", f"s_mov_b32 s{SV+2}, 0x8000000", f"s_mov_b32 s{SV+3}, 0x20000",
               f"s_mov_b64 s[{SQ}:{SQ+1}], s[40:41]", f"s_mov_b32 s{SQ+2}, 0x4000", f"s_mov_b32 s{SQ+3}, 0x20000",
               f"s_lshr_b32 s{sHEAD}, s2, 3", f"s_lshl_b32 s{sOUT}, s{sHEAD}, 9",
               f"buffer_load_dwordx4 {vr(vQ,4)}, v{vX}, s[{SQ}:{SQ+3}], s{sOUT} offen"])
    su.append([f"s_mov_b64 s[{SW}:{SW+1}], s[54:55]", f"s_mov_b32 s{SW+2}, 0x20000000", f"s_mov_b32 s{SW+3}, 0x20000",
               f"s_lshl_b32 s{sT2}, s{sHEAD}, 10", f"s_add_u32 s{sT2}, s{sT2}, {hex(CT0)}",
               f"v_and_b32 v{vT+3}, 1, v0", f"v_lshlrev_b32 v{vT+3}, 9, v{vT+3}", f"s_mov_b64 exec, 3",
               f"buffer_load_dword v{vT+5}, v{vT+3}, s[{SW}:{SW+3}], s{sT2} offen sc1",
               f"s_mov_b64 exec, -1"])
    su.append([f"s_mov_b64 s[{SF}:{SF+1}], s[48:49]", f"s_mov_b32 s{SF+2}, 0x40000", f"s_mov_b32 s{SF+3}, 0x20000",
               f"s_lshl_b32 s{sT3}, s3, 9", f"s_add_u32 s{sCT}, s{sT2}, s{sT3}"])
    su2 = []
    su2.append([f"s_mov_b64 s[{SO}:{SO+1}], s[50:51]", f"s_mov_b32 s{SO+2}, 0x4000", f"s_mov_b32 s{SO+3}, 0x20000",
                f"s_mov_b32 s{sLE}, 0x3db8aa3b          ; log2(e)/16"])
    su2.append([f"s_lshl_b32 s{sVB}, s{sHEAD}, 22", f"s_or_b32 s{sVB}, s{sVB}, s{sROT}"])
    su2.append([f"s_lshl_b32 s{sWSL}, s2, 11",
                f"s_lshl_b32 s{sSS}, s2, 8", f"s_add_u32 s{sSS}, s{sSS}, {hex(SC0)}",
                f"s_lshl_b32 s{sSB}, s{sHEAD}, 11", f"s_add_u32 s{sSB}, s{sSB}, {hex(SC0)}"])
    su2.append([f"v_lshlrev_b32 v{vX+1}, 7, v{vT}",
                f"v_lshl_add_u32 v{vX+1}, v{vT+1}, 5, v{vX+1}"])
    su2.append([f"v_lshlrev_b32 v{vX+2}, 7, v{vT+2}", f"v_lshl_add_u32 v{vX+2}, v{vT+1}, 5, v{vX+2}",
                f"v_lshl_add_u32 v{vX+2}, v{vT}, 4, v{vX+2}"])
    su2.append([f"v_lshlrev_b32 v{vX+3}, 4, v0",
                f"v_lshl_add_u32 v{vX+5}, v{vT+1}, 2, v{vX}"])
    su2.append([f"s_lshl_b32 s{sT3}, s3, 2", f"s_add_u32 s{sT3}, s{sT3}, s{sHEAD}", f"s_xor_b32 s{sT3}, s{sT3}, s2",
                f"s_and_b32 s{sFIN}, s{sT3}, 7",
                f"s_mov_b32 s{sNX}, {LQ}", f"s_cmp_eq_u32 s{sFIN}, 0", f"s_cselect_b32 s{sLM}, {8*ND}, {LQ}"])
    su2.append([f"s_xor_b32 s{sOUT+k}, s{sWSL}, {k << 11}" for k in range(1, 5)])
    su2.append([f"s_xor_b32 s{sOUT+k}, s{sWSL}, {k << 11}" for k in range(5, 8)])

    def shift(vm, dit):
        return [f"{t[0]}{int(t[1:]) + dit*(16 if t[0] == 'L' else 2)}" for t in vm]
    def loop(name, first, last, evs):
        e(f"s_mov_b32 s{sIT}, {first}")
        entry = list(g.vm)
        g.label(f"L_{name}")
        body(first)
        assert g.vm == shift(entry, 1), (g.vm, entry)
        for it, lab in evs:
            assert first <= it <= last
            e(f"s_cmp_eq_u32 s{sIT}, {it}")
            e(f"s_cbranch_scc1 L_{lab}")
        g.label(f"L_{name}_back")
        e(f"s_add_u32 s{sIT}, s{sIT}, 1")
        e(f"s_cmp_le_u32 s{sIT}, {last}")
        e(f"s_cbranch_scc1 L_{name}")
        g.vm = shift(entry, last - first + 1)

    g.c("---- K phase: one iteration consumes two tiles")
    loop("k", 0, 14, [])
    g.c("---- last K iteration (starts loading V); set-up for the second half rides along")
    body(15, [(su[:1], [0]), (su[1:2], [1]), (su[2:], [2]), (su2, [6, 8, 10, 14])])
    assert not any(t[0] == "X" for t in g.vm)
    stamp(2)
    S4 = P
    sc = []
    for i in range(8):
        qr = vQ + (i >> 1)
        grp = [f"v_and_b32 v{vT}, 0xffff0000, v{qr}" if i & 1 else f"v_lshlrev_b32 v{vT}, 16, v{qr}"]
        for r in range(4):
            grp.append(f"{'v_fmac_f32' if i else 'v_mul_f32'} v{S4+r}, v{vT}, v{vACC+i*4+r}")
        sc.append(grp)
    sc.append([f"v_readlane_b32 s{sTAG}, v{vT+5}, 0", f"v_readlane_b32 s{sTB}, v{vT+5}, s3"])
    sc2 = [[f"s_xor_b32 s{sTAG}, s{sTAG}, 0x5bd1e995"]]
    for sh in (8, 4, 2, 1):
        sc2.append([f"v_add_f32_dpp v{S4+r}, v{S4+r}, v{S4+r} row_ror:{sh} row_mask:0xf bank_mask:0xf" for r in range(4)])
    sc2.append([f"s_mov_b32 vcc_lo, 0x00020002", f"s_mov_b32 vcc_hi, 0x00020002",
                f"v_cndmask_b32 v{Y}, v{S4}, v{S4+2}, vcc", f"v_mov_b32 v{Y+1}, s{sTAG}",
                f"v_cndmask_b32 v{Y+2}, v{S4+1}, v{S4+3}, vcc", f"v_mov_b32 v{Y+3}, s{sTAG}"])
    sc2.append([f"s_mov_b32 exec_lo, 0x00030003", f"s_mov_b32 exec_hi, 0x00030003",
                f"buffer_store_dwordx4 {vr(Y,4)}, v{vX+2}, s[{SW}:{SW+3}], s{sSS} offen sc1",
                f"s_mov_b64 exec, -1"])
    g.c("---- first V iteration; computes and publishes the partial scores of this wave")
    zero_tiles.add(32)
    body(16, [(sc, [0, 2, 4, 6]), (sc2, [8, 10, 14])])

    def fetch(tag=None):
        for k in range(1, 8):
            ins = f"buffer_load_dwordx4 {vr(Y+4*(k-1),4)}, v{vX+3}, s[{SW}:{SW+3}], s{sOUT+k} offen sc1"
            if tag:
                g.vmem(ins, tag)
            else:
                e(ins)
    fdr = {}
    def drain(n, m):
        for x in range(n, m):
            if x == m - pre:
                e(f"s_cmp_eq_u32 s{sFIN}, 0")
                e(f"s_cbranch_scc1 L_fdrain{m & 15}")
                fdr[m & 15] = (x, m, list(g.vm))
            if x & 1:
                g.wait({f"L{x}"})
                consume(x)
    def check(regs):
        e(f"v_xor_b32 v{vT}, s{sTAG}, v{regs[0]}")
        e(f"v_xor_b32 v{vT+1}, s{sTAG}, v{regs[1]}")
        for i, r in enumerate(regs[2:]):
            e(f"v_bitop3_b32 v{vT+(i&1)}, v{vT+(i&1)}, v{r}, s{sTAG} bitop3:0xf6   ; a | (b ^ c)")
        e(f"v_or_b32 v{vT}, v{vT}, v{vT+1}")
        e(f"v_cmp_ne_u32 vcc, 0, v{vT}")

    hs = 1 if hoist else 0
    lastplain = 17
    while ((lastplain + 1) * 16 + 15 + F + hs) >> 3 < DYN0 - 2:
        lastplain += 1
    assert dQ >= 1
    g.c("---- V phase")
    loop("v", 17, lastplain, [(lastplain - dQ, "evQ")])
    g.c("the scores of all 16 waves of this head were requested more than one window ago")
    g.label("L_chkQ")
    check([Y + 5, Y + 7, Y + 9, Y + 11])
    e(f"s_cbranch_vccnz L_retryQ")
    g.label("L_okQ")
    sm = []
    sm.append([f"v_add_f32_dpp v{P+r}, v{Y+4+2*r}, v{Y+4+2*r} row_ror:8 row_mask:0xf bank_mask:0xf" for r in range(4)])
    for sh in (4, 2, 1):
        sm.append([f"v_add_f32_dpp v{P+r}, v{P+r}, v{P+r} row_ror:{sh} row_mask:0xf bank_mask:0xf" for r in range(4)])
    sm.append([f"v_max3_f32 v{vT}, v{P}, v{P+1}, v{P+2}", f"v_max_f32 v{vT}, v{vT}, v{P+3}",
               f"v_mov_b32 v{vT+1}, v{vT}", "s_nop 1", f"v_permlane32_swap_b32 v{vT}, v{vT+1}",
               f"v_max_f32 v{vT}, v{vT}, v{vT+1}"])
    sm.append([f"v_mov_b32 v{vT+1}, v{vT}", "s_nop 1", f"v_permlane16_swap_b32 v{vT}, v{vT+1}",
               f"v_max_f32 v{vT}, v{vT}, v{vT+1}"])
    sm.append([f"v_sub_f32 v{P+r}, v{P+r}, v{vT}" for r in range(4)])
    sm.append([f"v_mul_f32 v{P+r}, s{sLE}, v{P+r}" for r in range(4)])
    sm.append([f"v_exp_f32 v{P+r}, v{P+r}" for r in range(4)] + ["s_nop 0"])
    sm.append([f"v_add_f32 v{vT}, v{P}, v{P+1}", f"v_add_f32 v{vT+1}, v{P+2}, v{P+3}", f"v_add_f32 v{vT}, v{vT}, v{vT+1}",
               f"v_mov_b32 v{vT+1}, v{vT}", "s_nop 1", f"v_permlane32_swap_b32 v{vT}, v{vT+1}",
               f"v_add_f32 v{vT}, v{vT}, v{vT+1}"])
    sm.append([f"v_mov_b32 v{vT+1}, v{vT}", "s_nop 1", f"v_permlane16_swap_b32 v{vT}, v{vT+1}",
               f"v_add_f32 v{vT}, v{vT}, v{vT+1}", f"v_rcp_f32 v{vT}, v{vT}", "s_nop 0"])
    sm.append([f"v_mul_f32 v{P+r}, v{P+r}, v{vT}" for r in range(4)])
    it = lastplain + 1
    g.c("softmax over the 16 scores (4 registers x 4 lane groups), spread over this iteration; first tickets")
    body(it, [(sm, [0, 2, 4, 6, 8, 10, 12, 14])])
    assert not drains
    it += 1
    g.c("---- tiles by ticket")
    while True:
        entry = list(g.vm)
        pos, nd = len(g.lines), len(drains)
        body(it)
        it += 1
        if g.vm == shift(entry, 1) and len(drains) == nd + 2:
            g.lines.insert(pos, "L_dyn:")
            break
    e(f"s_branch L_dyn")
    seen = {}
    for lab, n, m, vm in drains:
        g.vm = list(vm)
        start = len(g.lines)
        drain(n, m)
        code = g.lines[start:]
        del g.lines[start:]
        seen.setdefault("\n".join(code), []).append(lab)
    g.c("---- no tile left: consume what is in flight (the finishing wave already asks for its peers' partials)")
    for par, (x0, m, vm) in fdr.items():
        g.vm = list(vm)
        g.label(f"L_fdrain{par}")
        fetch("Y")
        for x in range(x0, m):
            if x & 1:
                g.wait({f"L{x}"})
                consume(x)
        e("s_branch L_epi")
    keys = list(seen)
    for i, key in enumerate(keys):
        for lab in seen[key]:
            g.label(lab)
        g.lines.append(key)
        if i + 1 < len(keys):
            e("s_branch L_epi")

    ytags = [Y + 1 + 2 * i for i in range(14)]
    g.c("---- o partial: sum over r of p[r] * acc[r][d]; lane (c, g) ends up with columns 8c + 2g, 8c + 2g + 1")
    g.label("L_epi")
    t = vR
    e(f"v_mov_b32 v{t+9}, s{sTAG}")
    for i in range(8):
        a = vACC + i * 4
        e(f"v_mul_f32 v{t+i}, v{P}, v{a}")
        e(f"v_fmac_f32 v{t+i}, v{P+1}, v{a+1}")
        e(f"v_fmac_f32 v{t+i}, v{P+2}, v{a+2}")
        e(f"v_fmac_f32 v{t+i}, v{P+3}, v{a+3}")
    e(f"v_mov_b32 v{t+11}, s{sTAG}")
    e(f"s_mov_b32 s{sCNT}, 0")
    for m in range(4):
        e(f"v_permlane32_swap_b32 v{t+m}, v{t+m+4}")
    for m in range(4):
        e(f"v_add_f32 v{t+m}, v{t+m}, v{t+m+4}")
    e(f"s_cmp_eq_u32 s{sFIN}, 0")
    e("s_nop 0")
    for m in range(2):
        e(f"v_permlane16_swap_b32 v{t+m}, v{t+m+2}")
    for m in range(2):
        e(f"v_add_f32 v{t+8+2*m}, v{t+m}, v{t+m+2}")
    stamp(1)
    e(f"s_cbranch_scc1 L_look")
    e(f"buffer_store_dwordx4 {vr(t+8,4)}, v{vX+3}, s[{SW}:{SW+3}], s{sWSL} offen sc1")
    e(f"s_branch L_exit" if stamps else "s_endpgm")
    g.label("L_again")
    fetch()
    g.label("L_look")
    e(f"s_add_u32 s{sCNT}, s{sCNT}, 1")
    e(f"s_cmp_ge_u32 s{sCNT}, {hex(SPIN)}")
    e(f"s_waitcnt vmcnt(0)")
    check(ytags)
    e(f"s_cbranch_scc1 L_fin")
    e(f"s_cbranch_vccnz L_again")
    g.label("L_fin")
    y = lambda k, m: Y + 4 * (k - 1) + 2 * m
    for m in range(2):
        e(f"v_add_f32 v{y(2,m)}, v{y(2,m)}, v{y(3,m)}")
        e(f"v_add_f32 v{y(4,m)}, v{y(4,m)}, v{y(5,m)}")
        e(f"v_add_f32 v{y(6,m)}, v{y(6,m)}, v{y(7,m)}")
        e(f"v_add_f32 v{t+m}, v{t+8+2*m}, v{y(1,m)}")
    for m in range(2):
        e(f"v_add_f32 v{y(4,m)}, v{y(4,m)}, v{y(6,m)}")
        e(f"v_add_f32 v{t+m}, v{t+m}, v{y(2,m)}")
    for m in range(2):
        e(f"v_add_f32 v{t+m}, v{t+m}, v{y(4,m)}")
    e(f"v_cvt_pk_bf16_f32 v{t}, v{t}, v{t+1}")
    e(f"buffer_store_dword v{t}, v{vX+5}, s[{SO}:{SO+3}], s{sOUT} offen")
    g.label("L_exit")
    if stamps:
        e("s_waitcnt vmcnt(0)")
        e("s_memrealtime s[70:71]")
        e("s_waitcnt lgkmcnt(0)")
        e("s_mov_b64 exec, 1")
        for i in range(4):
            e(f"v_mov_b32 v{8+i}, s{64+2*i}")
        e(f"s_lshl_b32 s56, s2, 5")
        e(f"s_lshl_b32 s57, s3, 4")
        e(f"s_add_u32 s56, s56, s57")
        e(f"s_add_u32 s56, s56, {1<<20}")
        e(f"buffer_store_dwordx4 v[8:11], off, s[{SW}:{SW+3}], s56")
    g.label("L_end")
    e("s_endpgm")

    def emitQ():
        e(f"buffer_load_dwordx4 {vr(Y+4,4)}, v{vX+1}, s[{SW}:{SW+3}], s{sSB} offen sc1")
        e(f"buffer_load_dwordx4 {vr(Y+8,4)}, v{vX+1}, s[{SW}:{SW+3}], s{sSB} offen offset:16 sc1")
    g.c("---- out of line: fetch the partial scores of the head (not counted: waits only get stricter)")
    g.label("L_evQ")
    emitQ()
    e(f"s_mov_b32 s{sCNT}, 0")
    e(f"s_branch L_v_back")
    g.label("L_retryQ")
    emitQ()
    e(f"s_add_u32 s{sCNT}, s{sCNT}, 1")
    e(f"s_cmp_lt_u32 s{sCNT}, {hex(SPIN)}")
    e(f"s_waitcnt vmcnt(0)")
    e(f"s_cbranch_scc1 L_chkQ")
    g.label("L_last")
    e(f"s_branch L_okQ")

    out = HEADER
    out += f"; @launch grid=(256,1,1) block=(128,1,1) lds=0\n"
    out += DOC
    out += f""".amdgcn_target "amdgcn-amd-amdhsa--gfx950"
.text
.globl {NAME}
.p2align 8
.type {NAME},@function
{NAME}:
"""
    out += g.text()
    out += f""".section .rodata,"a"
.p2align 6
.amdhsa_kernel {NAME}
  .amdhsa_next_free_vgpr {NV}
  .amdhsa_next_free_sgpr 96
  .amdhsa_accum_offset {NV}
  .amdhsa_group_segment_fixed_size 0
  .amdhsa_kernarg_size 64
  .amdhsa_user_sgpr_count 2
  .amdhsa_user_sgpr_kernarg_segment_ptr 1
  .amdhsa_system_sgpr_workgroup_id_x 1
  .amdhsa_float_denorm_mode_32 3
.end_amdhsa_kernel
"""
    return out

if __name__ == "__main__":
    import ast
    kw = {}
    for a in sys.argv[2:]:
        k, v = a.split("=")
        try: kw[k] = ast.literal_eval(v)
        except Exception: kw[k] = v
    open(sys.argv[1], "w").write(gen(**kw))
```

```python
import sys, json, os, glob
sys.path.insert(0, ".")
import rdgen3, build
def run(cands, gen=None, ev=False):
    gen = gen or rdgen3.gen
    for f in glob.glob("m_*") + glob.glob("m[0-9]*"):
        os.remove(f)
    names = []
    for i, (name, kw) in enumerate(cands):
        n = f"m{i}"
        txt = gen(**kw)
        open(n + ".s", "w").write(txt)
        build.build(n + ".s")
        import re
        m = re.search(r"@launch grid=\((\d+),1,1\) block=\((\d+),1,1\) lds=(\d+)", txt)
        names.append((n, m.groups(), name))
    print(json.dumps(["work/bench", "work/runm.sh", "work/legend.txt"] + [f"work/{n}.co" for n, _, _ in names]))
    open("legend.txt", "w").write("".join(nm + "\n" for _, _, nm in names))
    with open("runm.sh", "w") as f:
        f.write("K=standalone__low_rank_proj_linformer__decode_kernel\n")
        f.write("MODE=${2:-rdflush} STAMPS=1 timeout 500 ./bench ${1:-20} " + " ".join(f"{n}.co:$K:{g[0]}:{g[1]}:{g[2]}" for n, g, _ in names) + " | paste - - | awk '{print \"ev\", $3, \"bad\", $15, \"| maxend med\", $21, \"min\", $23, \"p75\", $25, \"mean\", $29, \"s1\", $31, $33, \"hm2\", $35}' | paste - legend.txt\n")
        if ev:
            f.truncate(0); f.seek(0)
            f.write("K=standalone__low_rank_proj_linformer__decode_kernel\n")
            f.write("MODE=${2:-rdflush} timeout 550 ./bench ${1:-20} " + " ".join(f"{n}.co:$K:{g[0]}:{g[1]}:{g[2]}" for n, g, _ in names) + " | awk '{print \"ev med\", $3, \"min\", $6, \"p25\", $8, \"p75\", $10, \"bad\", $15}' | paste - legend.txt\n")
```

```python
import sys
from gen import G, vr, HEADER, NAME

def gen(F=11, pol="nt", stamps=False, dQ=2, aslot=6, ND=4, tstamp=0, SPIN=0x40000, pre=4, R=2, rot=(3, 4, 16),
        late=True, Fpat=None, outpol="", FD=None, pf=0, noef=False, dyf=None, gath=0):
    g = G()
    e = g.e
    SK, SV, SE, SF, SQ, SO, SW = 4, 8, 12, 16, 20, 24, 32
    sTAG, sTB, sLE = 28, 29, 31
    sLO, sHI, sOFF, sEOFF = 36, 37, 38, 39
    sT0, sT1, sT2, sT3 = 56, 57, 58, 59
    sWSL, sHEAD, sCNT, sIT = 60, 61, 62, 63
    sKV0, sTC, sROT = 72, 73, 74
    sSB, sSS, sCT, sVB = 75, 76, 77, 78
    sOUT = 80
    sNX, sLM, sFIN = 88, 89, 90
    SP, sPF = 92, 91
    vKV, vEF = 1, 2
    vT = 4
    vX = 10
    vQ = 16
    vTK = 16
    P = 20
    vA = 24
    vACC = 32
    vB = 64
    vR = 96
    NR = 16
    Y = vR + NR * 4
    NV = Y + 28
    assert F <= 14 and aslot >= F - 9 and ND % 2 == 0
    if ND == 0:
        R = 0
    NSV = 32 - ND
    LQ = 8 * ND - R
    SC0, CT0 = 0x80000, 0x90000
    polf = " " + pol if pol else ""
    outp = " " + outpol if outpol else ""

    def stamp(idx):
        if stamps:
            e(f"s_memrealtime s[{64+2*idx}:{65+2*idx}]")

    e(f"s_load_dwordx16 s[40:55], s[0:1], 0")
    e(f"s_cmp_ge_u32 s2, 256")
    e(f"s_cbranch_scc1 L_end")
    stamp(0)
    e(f"v_and_b32 v{vT}, 15, v0                ; c")
    e(f"v_bfe_u32 v{vT+1}, v0, 4, 2            ; g")
    e(f"v_lshrrev_b32 v{vT+2}, 6, v0           ; h")
    e(f"v_lshlrev_b32 v{vX}, 4, v{vT}")
    e(f"v_lshl_add_u32 v{vX}, v{vT+2}, 8, v{vX}      ; h*256 + c*16")
    e(f"v_lshl_add_u32 v{vKV}, v{vT+1}, 12, v{vX}")
    if gath == 1:
        e(f"v_lshlrev_b32 v{vEF}, 7, v{vT+1}")
    elif gath == 2:
        e(f"v_and_b32 v{vEF}, 1, v{vT+1}")
        e(f"v_lshlrev_b32 v{vEF}, 4, v{vEF}")
        e(f"v_lshrrev_b32 v{vT+3}, 1, v{vT+1}")
        e(f"v_lshl_add_u32 v{vEF}, v{vT+3}, 7, v{vEF}")
    else:
        e(f"v_lshlrev_b32 v{vEF}, 4, v{vT+1}")
    e(f"v_lshl_add_u32 v{vEF}, v{vT}, 14, v{vEF}     ; c*16384 + g*16")
    e(f"s_mov_b32 s{SK+2}, 0x8000000")
    e(f"s_mov_b32 s{SK+3}, 0x20000")
    e(f"s_mov_b32 s{SE+2}, 0x40000")
    e(f"s_mov_b32 s{SE+3}, 0x20000")
    g.c("rows of this workgroup: address bit 15 = slice bit 0, bits 20..21 = slice bits 1..2, bits 22.. = head")
    e(f"s_lshr_b32 s{sKV0}, s2, 1")
    e(f"s_lshl_b32 s{sKV0}, s{sKV0}, 20")
    e(f"s_and_b32 s{sT0}, s2, 1")
    e(f"s_lshl_b32 s{sT0}, s{sT0}, 15")
    e(f"s_or_b32 s{sKV0}, s{sKV0}, s{sT0}")
    if rot:
        e(f"s_bfe_u32 s{sROT}, s2, {hex(rot[1] << 16 | rot[0])}")
        e(f"s_lshl_b32 s{sROT}, s{sROT}, {rot[2]}")
        e(f"s_or_b32 s{sKV0}, s{sKV0}, s{sROT}")
    e(f"s_mov_b32 s{sTC}, 0")
    e(f"s_mov_b32 s{sOFF}, s{sKV0}")
    e(f"s_bfe_u32 s{sEOFF}, s{sOFF}, 0xe0008")
    e(f"s_waitcnt lgkmcnt(0)")
    e(f"s_mov_b64 s[{SK}:{SK+1}], s[42:43]")
    e(f"s_mov_b64 s[{SE}:{SE+1}], s[46:47]")

    DYN0 = 32 + NSV
    drains = []
    def request(T):
        e(f"v_mov_b32 v{vTK+(T&1)}, 1")
        e(f"s_mov_b64 exec, 1")
        g.vmem(f"buffer_atomic_add v{vTK+(T&1)}, off, s[{SW}:{SW+3}], s{sCT} sc0", f"R{T}")
        e(f"s_mov_b64 exec, -1")

    def issue(m, n=None):
        T, k = m >> 3, m & 7
        ph = int(T >= 32)
        if k == 0 and m > 0:
            if T < DYN0:
                if T == 32:
                    e(f"s_mov_b32 s{sTC}, 0")
                else:
                    e(f"s_add_u32 s{sTC}, s{sTC}, {'0x4000' if T & 1 else '0xc000'}")
                e(f"s_xor_b32 s{sOFF}, s{sTC}, s{sKV0}")
            else:
                g.wait({f"R{T}"})
                e(f"v_readfirstlane_b32 s{sT0}, v{vTK+(T&1)}")
                e(f"s_sub_u32 s{sT0}, s{sT0}, s{sTB}")
                if dyf is not None:
                    e(f"s_cmp_eq_u32 s{sT0}, {LQ - 1 - dyf}")
                    e(f"s_cselect_b32 s{sFIN}, 0, s{sFIN}")
                    e(f"s_cselect_b32 s{sLM}, {8*ND}, s{sLM}")
                e(f"s_cmp_ge_u32 s{sT0}, {LQ}")
                e(f"s_cselect_b32 s{sT0}, s{sNX}, s{sT0}")
                e(f"s_addc_u32 s{sNX}, s{sNX}, 0")
                e(f"s_cmp_ge_u32 s{sT0}, s{sLM}")
                lab = f"L_drain{len(drains)}"
                drains.append((lab, n, m, list(g.vm)))
                e(f"s_cbranch_scc1 {lab}")
                e(f"s_and_b32 s{sT1}, s{sT0}, 3")
                e(f"s_lshl_b32 s{sOFF}, s{sT1}, 14")
                e(f"s_bfe_u32 s{sT1}, s{sT0}, 0x20002")
                e(f"s_lshl_b32 s{sT1}, s{sT1}, 20")
                e(f"s_or_b32 s{sOFF}, s{sOFF}, s{sT1}")
                if ND > 2:
                    e(f"s_lshr_b32 s{sT0}, s{sT0}, 4")
                    e(f"s_add_u32 s{sT0}, s{sT0}, {NSV//2}")
                    e(f"s_lshl_b32 s{sT0}, s{sT0}, 16")
                    e(f"s_or_b32 s{sOFF}, s{sOFF}, s{sT0}")
                e(f"s_xor_b32 s{sOFF}, s{sOFF}, s{sVB}")
            e(f"s_bfe_u32 s{sEOFF}, s{sOFF}, 0xe0008")
            if gath:
                e(f"s_bfe_u32 s{sT0}, s{sOFF}, 0x40010")
                e(f"s_bfe_u32 s{sT1}, s{sOFF}, 0x1000e")
                e(f"s_lshl_b32 s{sT0}, s{sT0}, 1")
                e(f"s_or_b32 s{sT0}, s{sT0}, s{sT1}")
                e(f"s_lshl_b32 s{sEOFF}, s{sT0}, {9 if gath == 1 else 8}")
            if pf and not (T & 1) and T < DYN0 and n is not None:
                e(f"s_add_u32 s{sT0}, s{sTC}, {pf << 16}")
                e(f"s_and_b32 s{sT0}, s{sT0}, 0xf0000")
                e(f"s_lshr_b32 s{sT0}, s{sT0}, 8")
                e(f"s_or_b32 s{sT0}, s{sT0}, s{sPF}")
                e(f"s_mov_b64 exec, 1")
                e(f"buffer_load_dword v{vX+4}, off, s[{SP}:{SP+3}], s{sT0}")
                e(f"s_mov_b64 exec, -1")
            if ND and T + 2 >= DYN0:
                request(T + 2)
        if k == aslot and not noef:
            srd = SF if ph else SE
            g.vmem(f"buffer_load_dwordx4 {vr(vA+(T&1)*4,4)}, v{vEF}, s[{srd}:{srd+3}], s{sEOFF} offen", f"A{T}")
        srd = SV if ph else SK
        r = vR + (m % NR) * 4
        g.vmem(f"buffer_load_dwordx4 {vr(r,4)}, v{vKV}, s[{srd}:{srd+3}], s{sOFF} offen offset:{k*512}{polf}", f"L{m}")

    zero_tiles = set()
    def consume(n):
        if not (n & 1):
            return
        T, q = n >> 3, (n >> 1) & 3
        x0 = vR + ((n - 1) % NR) * 4
        x1 = vR + (n % NR) * 4
        def perm(i):
            sel = sHI if (i & 1) else sLO
            e(f"v_perm_b32 v{vB+i*4+q}, v{x1+(i>>1)}, v{x0+(i>>1)}, s{sel}")
        def mfma(i):
            acc = vACC + i * 4
            cin = "0" if T in zero_tiles else vr(acc, 4)
            e(f"v_mfma_f32_16x16x32_bf16 {vr(acc,4)}, {vr(vA+(T&1)*4,4)}, {vr(vB+i*4,4)}, {cin}")
        if q != 3:
            for i in range(8):
                perm(i)
            return
        perm(0); perm(1); perm(2)
        for i in range(8):
            mfma(i)
            if i + 3 < 8:
                perm(i + 3)

    def slot(n):
        need = {f"L{n}"}
        if Fpat and Fpat[n % len(Fpat)]:
            need.add(f"L{n + Fpat[n % len(Fpat)]}")
        g.wait(need)
        m = n + F
        if (m & 7) == aslot and (m >> 3) - 2 >= (n >> 3):
            assert (m >> 3) - 2 == (n >> 3) and (n & 7) == 7, (n, m)
            consume(n)
            issue(m, n)
        else:
            issue(m, n)
            consume(n)

    def body(it, fills=()):
        st = [[list(gr), sl, sum(map(len, gr)), 0] for gr, sl in fills]
        for n in range(it * 16, it * 16 + 16):
            slot(n)
            for f in st:
                if (n & 15) in f[1]:
                    want = f[2] * (f[1].index(n & 15) + 1) / len(f[1])
                    while f[0] and f[3] < want:
                        grp = f[0].pop(0)
                        f[3] += len(grp)
                        for ins in grp:
                            e(ins)
        assert not any(f[0] for f in st)

    for n in range(F):
        issue(n)
    if pf:
        assert not rot
        e(f"s_bitcmp1_b32 s2, 7")
        e(f"s_cselect_b64 s[{SP}:{SP+1}], s[48:49], s[46:47]")
        e(f"s_mov_b32 s{SP+2}, 0x40000")
        e(f"s_mov_b32 s{SP+3}, 0x20000")
        e(f"s_bfe_u32 s{sT0}, s2, 0x40003")
        e(f"s_lshl_b32 s{sT0}, s{sT0}, 14")
        e(f"s_bfe_u32 s{sPF}, s{sKV0}, 0xe0008")
        e(f"s_or_b32 s{sPF}, s{sPF}, s{sT0}")
    e(f"s_mov_b32 s{sLO}, 0x05040100")
    e(f"s_mov_b32 s{sHI}, 0x07060302")
    for r in range(0, 32, 2):
        e(f"v_mov_b64 {vr(vACC+r,2)}, 0")

    su = []
    su.append([f"v_readfirstlane_b32 s3, v{vT+2}",
               f"s_mov_b64 s[{SV}:{SV+1}], s[44:45]", f"s_mov_b32 s{SV+2}, 0x8000000", f"s_mov_b32 s{SV+3}, 0x20000",
               f"s_mov_b64 s[{SQ}:{SQ+1}], s[40:41]", f"s_mov_b32 s{SQ+2}, 0x4000", f"s_mov_b32 s{SQ+3}, 0x20000",
               f"s_lshr_b32 s{sHEAD}, s2, 3", f"s_lshl_b32 s{sOUT}, s{sHEAD}, 9",
               f"buffer_load_dwordx4 {vr(vQ,4)}, v{vX}, s[{SQ}:{SQ+3}], s{sOUT} offen"])
    su.append([f"s_mov_b64 s[{SW}:{SW+1}], s[54:55]", f"s_mov_b32 s{SW+2}, 0x20000000", f"s_mov_b32 s{SW+3}, 0x20000",
               f"s_lshl_b32 s{sT2}, s{sHEAD}, 10", f"s_add_u32 s{sT2}, s{sT2}, {hex(CT0)}",
               f"v_and_b32 v{vT+3}, 1, v0", f"v_lshlrev_b32 v{vT+3}, 9, v{vT+3}", f"s_mov_b64 exec, 3",
               f"buffer_load_dword v{vT+5}, v{vT+3}, s[{SW}:{SW+3}], s{sT2} offen sc1",
               f"s_mov_b64 exec, -1"])
    su.append([f"s_mov_b64 s[{SF}:{SF+1}], s[48:49]", f"s_mov_b32 s{SF+2}, 0x40000", f"s_mov_b32 s{SF+3}, 0x20000",
               f"s_lshl_b32 s{sT3}, s3, 9", f"s_add_u32 s{sCT}, s{sT2}, s{sT3}"])
    su2 = []
    su2.append([f"s_mov_b64 s[{SO}:{SO+1}], s[50:51]", f"s_mov_b32 s{SO+2}, 0x4000", f"s_mov_b32 s{SO+3}, 0x20000",
                f"s_mov_b32 s{sLE}, 0x3db8aa3b          ; log2(e)/16"])
    vb = [f"s_lshl_b32 s{sVB}, s{sHEAD}, 22"]
    if rot:
        vb.append(f"s_or_b32 s{sVB}, s{sVB}, s{sROT}")
    if ND == 2:
        vb.append(f"s_xor_b32 s{sVB}, s{sVB}, 0xf0000")
    su2.append(vb)
    su2.append([f"s_lshl_b32 s{sWSL}, s2, 11",
                f"s_lshl_b32 s{sSS}, s2, 8", f"s_add_u32 s{sSS}, s{sSS}, {hex(SC0)}",
                f"s_lshl_b32 s{sSB}, s{sHEAD}, 11", f"s_add_u32 s{sSB}, s{sSB}, {hex(SC0)}"])
    su2.append([f"v_lshlrev_b32 v{vX+1}, 7, v{vT}",
                f"v_lshl_add_u32 v{vX+1}, v{vT+1}, 5, v{vX+1}"])
    su2.append([f"v_lshlrev_b32 v{vX+2}, 7, v{vT+2}", f"v_lshl_add_u32 v{vX+2}, v{vT+1}, 5, v{vX+2}",
                f"v_lshl_add_u32 v{vX+2}, v{vT}, 4, v{vX+2}"])
    su2.append([f"v_lshlrev_b32 v{vX+3}, 4, v0",
                f"v_lshl_add_u32 v{vX+5}, v{vT+1}, 2, v{vX}"])
    if dyf is not None:
        su2.append([f"s_mov_b32 s{sFIN}, 1", f"s_mov_b32 s{sNX}, {LQ}", f"s_mov_b32 s{sLM}, {LQ}"])
    else:
      su2.append([f"s_lshl_b32 s{sT3}, s3, 2", f"s_add_u32 s{sT3}, s{sT3}, s{sHEAD}", f"s_xor_b32 s{sT3}, s{sT3}, s2",
                f"s_and_b32 s{sFIN}, s{sT3}, 7",
                f"s_mov_b32 s{sNX}, {LQ}", f"s_cmp_eq_u32 s{sFIN}, 0", f"s_cselect_b32 s{sLM}, {8*ND}, {LQ}"])
    su2.append([f"s_xor_b32 s{sOUT+k}, s{sWSL}, {k << 11}" for k in range(1, 5)])
    su2.append([f"s_xor_b32 s{sOUT+k}, s{sWSL}, {k << 11}" for k in range(5, 8)])
    if not late:
        for grp in su + su2:
            for ins in grp:
                e(ins)

    def shift(vm, dit):
        return [f"{t[0]}{int(t[1:]) + dit*(16 if t[0] == 'L' else 2)}" for t in vm]
    def loop(name, first, last, evs):
        e(f"s_mov_b32 s{sIT}, {first}")
        entry = list(g.vm)
        g.label(f"L_{name}")
        body(first)
        assert g.vm == shift(entry, 1), (g.vm, entry)
        for it, lab in evs:
            assert first <= it <= last
            e(f"s_cmp_eq_u32 s{sIT}, {it}")
            e(f"s_cbranch_scc1 L_{lab}")
        g.label(f"L_{name}_back")
        e(f"s_add_u32 s{sIT}, s{sIT}, 1")
        e(f"s_cmp_le_u32 s{sIT}, {last}")
        e(f"s_cbranch_scc1 L_{name}")
        g.vm = shift(entry, last - first + 1)

    if Fpat and Fpat[-1]:
        raise SystemExit("last entry of Fpat must be 0")
    loop("k", 0, 14, [])
    g.c("requests outside the window count only make the counted waits stricter")
    if late:
        assert 16 - F >= 2
        body(15, [(su[:1], [0]), (su[1:2], [1]), (su[2:], [2]), (su2, [4, 6, 8, 10, 12])])
    else:
        body(15)
    if tstamp == 0:
        stamp(2)
    S4 = P
    sc = []
    for i in range(8):
        qr = vQ + (i >> 1)
        grp = [f"v_and_b32 v{vT}, 0xffff0000, v{qr}" if i & 1 else f"v_lshlrev_b32 v{vT}, 16, v{qr}"]
        for r in range(4):
            grp.append(f"{'v_fmac_f32' if i else 'v_mul_f32'} v{S4+r}, v{vT}, v{vACC+i*4+r}")
        sc.append(grp)
    sc.append([f"v_readlane_b32 s{sTAG}, v{vT+5}, 0", f"v_readlane_b32 s{sTB}, v{vT+5}, s3"])
    sc2 = [[f"s_xor_b32 s{sTAG}, s{sTAG}, 0x5bd1e995"]]
    for sh in (8, 4, 2, 1):
        sc2.append([f"v_add_f32_dpp v{S4+r}, v{S4+r}, v{S4+r} row_ror:{sh} row_mask:0xf bank_mask:0xf" for r in range(4)])
    sc2.append([f"s_mov_b32 vcc_lo, 0x00020002", f"s_mov_b32 vcc_hi, 0x00020002",
                f"v_cndmask_b32 v{Y}, v{S4}, v{S4+2}, vcc", f"v_mov_b32 v{Y+1}, s{sTAG}",
                f"v_cndmask_b32 v{Y+2}, v{S4+1}, v{S4+3}, vcc", f"v_mov_b32 v{Y+3}, s{sTAG}"])
    sc2.append([f"s_mov_b32 exec_lo, 0x00030003", f"s_mov_b32 exec_hi, 0x00030003",
                f"buffer_store_dwordx4 {vr(Y,4)}, v{vX+2}, s[{SW}:{SW+3}], s{sSS} offen sc1",
                f"s_mov_b64 exec, -1"])
    g.c("iteration 16 also computes and publishes the partial scores of this wave")
    zero_tiles.add(32)
    body(16, [(sc, [0, 2, 4, 6]), (sc2, [8, 10, 12])])

    def fetch(tag=None):
        for k in range(1, 8):
            ins = f"buffer_load_dwordx4 {vr(Y+4*(k-1),4)}, v{vX+3}, s[{SW}:{SW+3}], s{sOUT+k} offen sc1"
            if tag:
                g.vmem(ins, tag)
            else:
                e(ins)
    fdr = {}
    def drain(n, m):
        for x in range(n, m):
            if x == m - pre:
                e(f"s_cmp_eq_u32 s{sFIN}, 0")
                e(f"s_cbranch_scc1 L_fdrain{m & 15}")
                fdr[m & 15] = (x, m, list(g.vm))
            if x & 1:
                g.wait({f"L{x}"})
                consume(x)
    def check(regs):
        e(f"v_xor_b32 v{vT}, s{sTAG}, v{regs[0]}")
        e(f"v_xor_b32 v{vT+1}, s{sTAG}, v{regs[1]}")
        for i, r in enumerate(regs[2:]):
            e(f"v_bitop3_b32 v{vT+(i&1)}, v{vT+(i&1)}, v{r}, s{sTAG} bitop3:0xf6")
        e(f"v_or_b32 v{vT}, v{vT}, v{vT+1}")
        e(f"v_cmp_ne_u32 vcc, 0, v{vT}")

    lastplain = 17
    while ((lastplain + 1) * 16 + 15 + F) >> 3 < DYN0 - 2:
        lastplain += 1
    assert dQ >= 1
    loop("v", 17, lastplain, [(lastplain - dQ, "evQ")])
    if tstamp == 3:
        stamp(2)
    g.c("the scores of all 16 waves of this head were requested more than one window ago")
    g.label("L_chkQ")
    check([Y + 5, Y + 7, Y + 9, Y + 11])
    e(f"s_cbranch_vccnz L_retryQ")
    g.label("L_okQ")
    sm = []
    sm.append([f"v_add_f32_dpp v{P+r}, v{Y+4+2*r}, v{Y+4+2*r} row_ror:8 row_mask:0xf bank_mask:0xf" for r in range(4)])
    for sh in (4, 2, 1):
        sm.append([f"v_add_f32_dpp v{P+r}, v{P+r}, v{P+r} row_ror:{sh} row_mask:0xf bank_mask:0xf" for r in range(4)])
    sm.append([f"v_max3_f32 v{vT}, v{P}, v{P+1}, v{P+2}", f"v_max_f32 v{vT}, v{vT}, v{P+3}",
               f"v_mov_b32 v{vT+1}, v{vT}", "s_nop 1", f"v_permlane32_swap_b32 v{vT}, v{vT+1}",
               f"v_max_f32 v{vT}, v{vT}, v{vT+1}"])
    sm.append([f"v_mov_b32 v{vT+1}, v{vT}", "s_nop 1", f"v_permlane16_swap_b32 v{vT}, v{vT+1}",
               f"v_max_f32 v{vT}, v{vT}, v{vT+1}"])
    sm.append([f"v_sub_f32 v{P+r}, v{P+r}, v{vT}" for r in range(4)])
    sm.append([f"v_mul_f32 v{P+r}, s{sLE}, v{P+r}" for r in range(4)])
    sm.append([f"v_exp_f32 v{P+r}, v{P+r}" for r in range(4)] + ["s_nop 0"])
    sm.append([f"v_add_f32 v{vT}, v{P}, v{P+1}", f"v_add_f32 v{vT+1}, v{P+2}, v{P+3}", f"v_add_f32 v{vT}, v{vT}, v{vT+1}",
               f"v_mov_b32 v{vT+1}, v{vT}", "s_nop 1", f"v_permlane32_swap_b32 v{vT}, v{vT+1}",
               f"v_add_f32 v{vT}, v{vT}, v{vT+1}"])
    sm.append([f"v_mov_b32 v{vT+1}, v{vT}", "s_nop 1", f"v_permlane16_swap_b32 v{vT}, v{vT+1}",
               f"v_add_f32 v{vT}, v{vT}, v{vT+1}", f"v_rcp_f32 v{vT}, v{vT}", "s_nop 0"])
    sm.append([f"v_mul_f32 v{P+r}, v{P+r}, v{vT}" for r in range(4)])
    it = lastplain + 1
    g.c("softmax over the 16 scores (4 registers x 4 lane groups), spread over this iteration")
    body(it, [(sm, [0, 2, 4, 6, 8, 10, 12, 14])])
    assert not drains
    it += 1
    if ND:
        while ((it * 16 + F + 7) >> 3) < DYN0 + 1:
            body(it)
            it += 1
        entry = list(g.vm)
        g.label("L_dyn")
        body(it)
        assert g.vm == shift(entry, 1), (g.vm, entry)
        e(f"s_branch L_dyn")
    else:
        n = it * 16
        while n + F < 512:
            slot(n)
            n += 1
        drains.append(("L_drain0", n, 512, list(g.vm)))
        e(f"s_branch L_drain0")
    seen = {}
    for lab, n, m, vm in drains:
        g.vm = list(vm)
        start = len(g.lines)
        drain(n, m)
        code = g.lines[start:]
        del g.lines[start:]
        seen.setdefault("\n".join(code), []).append(lab)
    for par, (x0, m, vm) in fdr.items():
        g.vm = list(vm)
        g.label(f"L_fdrain{par}")
        fetch("Y")
        for x in range(x0, m):
            if x & 1:
                g.wait({f"L{x}"})
                consume(x)
        e("s_branch L_epi")
    keys = list(seen)
    for i, key in enumerate(keys):
        for lab in seen[key]:
            g.label(lab)
        g.lines.append(key)
        if i + 1 < len(keys):
            e("s_branch L_epi")

    ytags = [Y + 1 + 2 * i for i in range(14)]
    g.label("L_epi")
    t = vR
    e(f"v_mov_b32 v{t+9}, s{sTAG}")
    for i in range(8):
        a = vACC + i * 4
        e(f"v_mul_f32 v{t+i}, v{P}, v{a}")
        e(f"v_fmac_f32 v{t+i}, v{P+1}, v{a+1}")
        e(f"v_fmac_f32 v{t+i}, v{P+2}, v{a+2}")
        e(f"v_fmac_f32 v{t+i}, v{P+3}, v{a+3}")
    e(f"v_mov_b32 v{t+11}, s{sTAG}")
    e(f"s_mov_b32 s{sCNT}, 0")
    for m in range(4):
        e(f"v_permlane32_swap_b32 v{t+m}, v{t+m+4}")
    for m in range(4):
        e(f"v_add_f32 v{t+m}, v{t+m}, v{t+m+4}")
    e(f"s_cmp_eq_u32 s{sFIN}, 0")
    e("s_nop 0")
    for m in range(2):
        e(f"v_permlane16_swap_b32 v{t+m}, v{t+m+2}")
    for m in range(2):
        e(f"v_add_f32 v{t+8+2*m}, v{t+m}, v{t+m+2}")
    stamp(1)
    e(f"s_cbranch_scc1 L_look")
    e(f"buffer_store_dwordx4 {vr(t+8,4)}, v{vX+3}, s[{SW}:{SW+3}], s{sWSL} offen sc1")
    e(f"s_branch L_exit" if stamps else "s_endpgm")
    g.label("L_again")
    fetch()
    g.label("L_look")
    e(f"s_add_u32 s{sCNT}, s{sCNT}, 1")
    e(f"s_cmp_ge_u32 s{sCNT}, {hex(SPIN)}")
    e(f"s_waitcnt vmcnt(0)")
    check(ytags)
    e(f"s_cbranch_scc1 L_fin")
    e(f"s_cbranch_vccnz L_again")
    g.label("L_fin")
    y = lambda k, m: Y + 4 * (k - 1) + 2 * m
    for m in range(2):
        e(f"v_add_f32 v{y(2,m)}, v{y(2,m)}, v{y(3,m)}")
        e(f"v_add_f32 v{y(4,m)}, v{y(4,m)}, v{y(5,m)}")
        e(f"v_add_f32 v{y(6,m)}, v{y(6,m)}, v{y(7,m)}")
        e(f"v_add_f32 v{t+m}, v{t+8+2*m}, v{y(1,m)}")
    for m in range(2):
        e(f"v_add_f32 v{y(4,m)}, v{y(4,m)}, v{y(6,m)}")
        e(f"v_add_f32 v{t+m}, v{t+m}, v{y(2,m)}")
    for m in range(2):
        e(f"v_add_f32 v{t+m}, v{t+m}, v{y(4,m)}")
    e(f"v_cvt_pk_bf16_f32 v{t}, v{t}, v{t+1}")
    e(f"buffer_store_dword v{t}, v{vX+5}, s[{SO}:{SO+3}], s{sOUT} offen{outp}")
    if ND == 0:
        g.c("change the word the tag is derived from, for the next launch")
        e(f"s_add_u32 s{sTB}, s{sTB}, 1")
        e(f"v_mov_b32 v{t+2}, s{sTB}")
        e(f"s_mov_b64 exec, 1")
        e(f"buffer_store_dword v{t+2}, off, s[{SW}:{SW+3}], s{sCT}")
    g.label("L_exit")
    if stamps:
        e("s_waitcnt vmcnt(0)")
        e("s_memrealtime s[70:71]")
        e("s_waitcnt lgkmcnt(0)")
        e("s_mov_b64 exec, 1")
        for i in range(4):
            e(f"v_mov_b32 v{8+i}, s{64+2*i}")
        e(f"s_lshl_b32 s56, s2, 5")
        e(f"s_lshl_b32 s57, s3, 4")
        e(f"s_add_u32 s56, s56, s57")
        e(f"s_add_u32 s56, s56, {1<<20}")
        e(f"buffer_store_dwordx4 v[8:11], off, s[{SW}:{SW+3}], s56")
    g.label("L_end")
    e("s_endpgm")

    def emitQ():
        e(f"buffer_load_dwordx4 {vr(Y+4,4)}, v{vX+1}, s[{SW}:{SW+3}], s{sSB} offen sc1")
        e(f"buffer_load_dwordx4 {vr(Y+8,4)}, v{vX+1}, s[{SW}:{SW+3}], s{sSB} offen offset:16 sc1")
    g.label("L_evQ")
    emitQ()
    e(f"s_mov_b32 s{sCNT}, 0")
    e(f"s_branch L_v_back")
    g.label("L_retryQ")
    emitQ()
    e(f"s_add_u32 s{sCNT}, s{sCNT}, 1")
    e(f"s_cmp_lt_u32 s{sCNT}, {hex(SPIN)}")
    e(f"s_waitcnt vmcnt(0)")
    e(f"s_cbranch_scc1 L_chkQ")
    e(f"s_branch L_okQ")

    out = HEADER
    out += f"; @launch grid=(256,1,1) block=(128,1,1) lds=0\n"
    out += f""".amdgcn_target "amdgcn-amd-amdhsa--gfx950"
.text
.globl {NAME}
.p2align 8
.type {NAME},@function
{NAME}:
"""
    out += g.text()
    out += f""".section .rodata,"a"
.p2align 6
.amdhsa_kernel {NAME}
  .amdhsa_next_free_vgpr {NV}
  .amdhsa_next_free_sgpr 96
  .amdhsa_accum_offset {NV}
  .amdhsa_group_segment_fixed_size 0
  .amdhsa_kernarg_size 64
  .amdhsa_user_sgpr_count 2
  .amdhsa_user_sgpr_kernarg_segment_ptr 1
  .amdhsa_system_sgpr_workgroup_id_x 1
  .amdhsa_float_denorm_mode_32 3
.end_amdhsa_kernel
"""
    return out

if __name__ == "__main__":
    import ast
    kw = {}
    for a in sys.argv[2:]:
        k, v = a.split("=")
        try: kw[k] = ast.literal_eval(v)
        except Exception: kw[k] = v
    open(sys.argv[1], "w").write(gen(**kw))
```

```python
import sys
NAME = "standalone__low_rank_proj_linformer__decode_kernel"
def gen(g, w, t, s=(19,20,21), hd=(22,23,24,25,26), F=4, pol="nt", Fseq=None, rot=(), vrot=(), rc=None, oddF=None, numa=0, cK=0, cV=0, probe=None, pre=0, midq=3, F0=None, lowrot=()):
    L = []
    e = lambda x: L.append("    " + x)
    lab = lambda x: L.append(x + ":")
    G = 256
    W = 1 << len(w)
    allb = sorted(list(g) + list(w) + list(t) + list(s) + list(hd))
    assert allb == list(range(8, 27)), allb
    e("s_load_dwordx16 s[40:55], s[0:1], 0")
    e(f"s_cmp_ge_u32 s2, {G}")
    e("s_cbranch_scc1 L_end")
    e("s_memrealtime s[64:65]")
    e("v_lshrrev_b32 v4, 6, v0")
    e("v_and_b32 v5, 15, v0")
    e("v_readfirstlane_b32 s3, v4")
    e("v_lshlrev_b32 v1, 4, v5")
    for i, b in enumerate(list(g)):
        e(f"v_bfe_u32 v6, v0, {4+i}, 1")
        e(f"v_lshl_add_u32 v1, v6, {b}, v1")
    partner = {20: 12, 21: 13, 19: 14, 26: 14}
    if probe:
        del partner[21]
    def mask(b):
        m = 1 << b
        if b in partner and (numa >> (partner[b] - 12)) & 1:
            m |= 1 << partner[b]
        return m
    for b in list(g):
        assert mask(b) == 1 << b
    e("s_mov_b32 s38, 0")
    for i, b in enumerate(list(s) + list(hd)):
        e(f"s_bfe_u32 s56, s2, {(1<<16)|i}")
        e(f"s_mul_i32 s56, s56, {mask(b)}")
        e(f"s_xor_b32 s38, s38, s56")
    for i, b in enumerate(list(w)):
        e(f"s_bfe_u32 s56, s3, {(1<<16)|i}")
        e(f"s_mul_i32 s56, s56, {mask(b)}")
        e(f"s_xor_b32 s38, s38, s56")
    for wb, ab in rot:
        assert ab >= 12
        e(f"s_bfe_u32 s56, s2, {(1<<16)|wb}")
        e(f"s_lshl_b32 s56, s56, {ab}")
        e(f"s_xor_b32 s38, s38, s56")
    for wb, ab in vrot:
        e(f"s_bfe_u32 s56, s2, {(1<<16)|wb}")
        e(f"s_lshl_b32 s56, s56, {ab}")
        e(f"v_xor_b32 v1, s56, v1")
    if lowrot:
        e("s_mov_b32 s57, 0")
        for wb, ab in lowrot:
            e(f"s_bfe_u32 s56, s2, {(1<<16)|wb}")
            e(f"s_lshl_b32 s56, s56, {ab}")
            e(f"s_xor_b32 s57, s57, s56")
        for q in range(4):
            e(f"s_xor_b32 s56, s57, {q << 10}")
            e(f"v_add_u32 v{200+q}, s56, v1")
    for sr, sz in ((4, 0x8000000), (32, 0x20000000)):
        e(f"s_mov_b32 s{sr+2}, {hex(sz)}")
        e(f"s_mov_b32 s{sr+3}, 0x20000")
    e("s_waitcnt lgkmcnt(0)")
    e("s_mov_b64 s[4:5], s[42:43]")
    e("s_mov_b64 s[32:33], s[54:55]")
    if probe:
        NLN, THR, NW = probe
        e("s_mov_b32 s60, 0")
        e("s_mov_b32 s61, 0")
        e(f"s_cmp_ge_u32 s3, {NW}")
        e("s_cbranch_scc1 L_nop2")
        e("s_cmp_ge_u32 s3, 2")
        e("s_cselect_b64 s[8:9], s[44:45], s[42:43]")
        e("s_mov_b32 s10, 0x8000000")
        e("s_mov_b32 s11, 0x20000")
        e("s_lshr_b32 s56, s2, 3")
        e("s_lshl_b32 s56, s56, 22")
        e("s_and_b32 s57, s3, 1")
        e("s_lshl_b32 s57, s57, 21")
        e("s_or_b32 s56, s56, s57")
        e("s_and_b32 s57, s2, 7")
        e("s_lshl_b32 s57, s57, 15")
        e("s_or_b32 s56, s56, s57")
        e("s_or_b32 s57, s56, 0x2000")
        e("v_and_b32 v6, 1, v0")
        e("v_lshlrev_b32 v7, 12, v6")
        e("v_bfe_u32 v6, v0, 1, 1")
        e("v_lshl_add_u32 v7, v6, 14, v7")
        e("v_bfe_u32 v6, v0, 2, 4")
        e("v_lshl_add_u32 v7, v6, 8, v7")
        e(f"s_mov_b64 exec, {hex((1 << NLN) - 1)}")
        e("buffer_load_dword v8, v7, s[8:11], s56 offen nt")
        e("buffer_load_dword v9, v7, s[8:11], s57 offen nt")
        e("s_waitcnt vmcnt(1)")
        e("s_memtime s[76:77]")
        e("s_waitcnt vmcnt(0)")
        e("s_memtime s[78:79]")
        e("s_mov_b64 exec, -1")
        e("s_waitcnt lgkmcnt(0)")
        e("s_sub_u32 s61, s78, s76")
        e(f"s_cmp_gt_u32 s61, {THR}")
        e("s_cselect_b32 s60, 0, 0x2000")
        e("s_lshr_b32 s61, s61, 2")
        e("s_min_u32 s61, s61, 255")
        lab("L_nop2")
        e("s_cmp_ge_u32 s3, 4")
        e("s_cbranch_scc1 L_noprobe")
        e("v_mov_b32 v6, s60")
        e("v_lshlrev_b32 v7, 2, v4")
        e("ds_write_b32 v7, v6")
        lab("L_noprobe")
        e("s_waitcnt lgkmcnt(0)")
        e("s_barrier")
        e("v_mov_b32 v7, 0")
        e("ds_read_b128 v[8:11], v7")
        e("s_andn2_b32 s38, s38, 0x2000")
        e("s_waitcnt lgkmcnt(0)")
        for i in range(4):
            e(f"v_readfirstlane_b32 s{90+i}, v{8+i}")
        for i in range(4):
            e(f"s_or_b32 s{90+i}, s{90+i}, s38")
    elif numa & 2:
        e("s_load_dwordx2 s[74:75], s[52:53], 0x20000")
        e("s_waitcnt lgkmcnt(0)")
        e("s_xor_b32 s38, s38, s74")
        e("s_xor_b32 s75, s75, s74")
    if rc:
        step, Flo, Fhi, thr = rc
        e("s_lshr_b32 s56, s2, 3")
        e(f"s_lshl_b32 s56, s56, 3")
        e("s_add_u32 s56, s56, s3")
        e("s_lshl_b32 s56, s56, 7")
        e("s_add_u32 s62, s52, s56")
        e("s_addc_u32 s63, s53, 0")
        e("s_mov_b64 vcc, 0")
    if oddF:
        Flo, Fhi = oddF
        e("s_getreg_b32 s56, hwreg(HW_REG_XCC_ID)")
        e("s_bitcmp0_b32 s56, 0")
        e("s_cselect_b64 vcc, -1, 0")
    nt = 1 << len(t)
    cur = None
    n = 0
    for ph in range(2):
        if ph == 1:
            e("s_mov_b64 s[4:5], s[44:45]")
            if probe:
                cur = None
            elif numa & 2:
                e("s_xor_b32 s38, s38, s75")
                cur = None
        for i in range(nt):
            a = 0
            for k, b in enumerate(t):
                if i >> k & 1:
                    a ^= mask(b)
            a ^= (cV if ph else cK) << 12
            imm, so = a & 0xfff, a & ~0xfff
            if cur != so:
                if probe:
                    e(f"s_xor_b32 s39, s{90 + ph*2 + ((so >> 21) & 1)}, {so}")
                else:
                    e(f"s_xor_b32 s39, s38, {so}")
                cur = so
            Fn = F if Fseq is None else Fseq[n % len(Fseq)]
            if F0 and n < F0[1]:
                Fn = F0[0]
            if rc and n % step == 0 and n > 0:
                k = n // step - 1
                if k > 0:
                    e("s_waitcnt lgkmcnt(0)")
                    e(f"s_cmp_lt_u32 s72, {8*(k-1)+thr}")
                    e("s_cselect_b64 vcc, -1, 0")
                e("s_mov_b32 s72, 1")
                e("s_atomic_add s72, s[62:63], 0 glc")
            if (rc and n >= 2 * step) or oddF:
                lo = Flo[n % len(Flo)] if isinstance(Flo, tuple) else Flo
                hi = Fhi[n % len(Fhi)] if isinstance(Fhi, tuple) else Fhi
                e(f"s_waitcnt vmcnt({hi-1})")
                if lo != hi:
                    e(f"s_cbranch_vccz L_f{n}")
                    e(f"s_waitcnt vmcnt({lo-1})")
                    lab(f"L_f{n}")
            elif n >= Fn:
                e(f"s_waitcnt vmcnt({Fn-1})")
            if n == int(midq * nt) // 2 + Fn - 1:
                e("s_memrealtime s[68:69]")
            if n == 0 and probe:
                e("s_memrealtime s[72:73]")
            if n == 8 and probe:
                e("s_waitcnt lgkmcnt(0)")
                e("s_sub_u32 s66, s72, s64")
                e("s_lshl_b32 s66, s66, 8")
                e("s_or_b32 s66, s66, s61")
            elif n == Fn:
                e("s_memrealtime s[66:67]")
            r = 8 + (n % (48 if W <= 8 else 16)) * 4
            if lowrot:
                e(f"buffer_load_dwordx4 v[{r}:{r+3}], v{200 + (imm >> 10)}, s[4:7], s39 offen offset:{imm & 1023} {pol}")
            else:
                e(f"buffer_load_dwordx4 v[{r}:{r+3}], v1, s[4:7], s39 offen offset:{imm} {pol}")
            n += 1
    e("s_waitcnt vmcnt(0)")
    e("s_memrealtime s[70:71]")
    e("s_waitcnt lgkmcnt(0)")
    for i in range(4):
        e(f"v_mov_b32 v{8+i}, s{64+2*i}")
    e(f"s_mul_i32 s56, s2, {W*16}")
    e(f"s_lshl_b32 s57, s3, 4")
    e(f"s_add_u32 s56, s56, s57")
    e(f"s_add_u32 s56, s56, {1<<20}")
    e("s_mov_b64 exec, 1")
    e("buffer_store_dwordx4 v[8:11], off, s[32:35], s56")
    lab("L_end")
    e("s_endpgm")
    nv = 208 if W <= 8 else 128
    if W > 8:
        L = [x.replace("XX", "") for x in L]
    out = f"; @launch grid=({G},1,1) block=({W*64},1,1) lds={64 if probe else 0}\n"
    out += f""".amdgcn_target "amdgcn-amd-amdhsa--gfx950"
.text
.globl {NAME}
.p2align 8
.type {NAME},@function
{NAME}:
""" + "\n".join(L) + f"""
.section .rodata,"a"
.p2align 6
.amdhsa_kernel {NAME}
  .amdhsa_next_free_vgpr {nv}
  .amdhsa_next_free_sgpr 96
  .amdhsa_accum_offset {nv}
  .amdhsa_group_segment_fixed_size 0
  .amdhsa_kernarg_size 64
  .amdhsa_user_sgpr_count 2
  .amdhsa_user_sgpr_kernarg_segment_ptr 1
  .amdhsa_system_sgpr_workgroup_id_x 1
.end_amdhsa_kernel
"""
    return out
if __name__ == "__main__":
    import ast
    kw = {}
    for a in sys.argv[2:]:
        k, v = a.split("=")
        try: kw[k] = ast.literal_eval(v)
        except Exception: kw[k] = v
    open(sys.argv[1], "w").write(gen(**kw))
```

```python
import sys
from gen import G, vr, HEADER, NAME

DOC = """;
;
; A tile is 32 rows: 8 x buffer_load_dwordx4 (lane group g = rows 8g..8g+7, lane c = 16-byte column chunk), transposed
; Hand-offs go through d_ws as {value, tag} pairs (write-through stores, L1-bypassing loads).  The tag and the first
"""

def gen(F=11, pol="nt", stamps=False, dQ=2, aslot=6, ND=4, SPIN=0x200000, pre=6, R=2, hoist=True, track=True, cpf=1, tight=0, t5=False, nE=0, nO=0, t3=False, dynn=True, nb=0, wide0=2, bar=0):
    g = G()
    e = g.e
    SK, SV, SE, SF, SQ, SO, SW = 4, 8, 12, 16, 20, 24, 32
    sTAG, sTB, sLE = 28, 29, 31
    sLO, sHI, sOFF, sEOFF = 36, 37, 38, 39
    sT0, sT1, sT2, sT3 = 56, 57, 58, 59
    sWSL, sHEAD, sCNT, sIT = 60, 61, 62, 63
    sKV0, sTC, sROT = 72, 73, 74
    sSB, sSS, sCT, sVB = 75, 76, 77, 78
    sOUT = 80
    sNX, sLM, sFIN = 88, 89, 90
    vKV, vEF = 1, 2
    vT = 4
    vX = 10
    vQ = 16
    vTK = 16
    P = 20
    vA = 24
    vACC = 32
    vB = 64
    vR = 96
    NR = 16
    Y = vR + NR * 4
    NV = Y + 28
    assert 9 <= F <= 14 and aslot >= F - 8 and ND % 2 == 0 and ND >= 2 and (nE & ~nO) == 0
    sXC = 91
    ncond = [0]
    NSV = 32 - ND
    LQ = 8 * ND - R
    SC0, CT0 = 0x80000, 0x90000
    polf = " " + pol if pol else ""

    def stamp(idx):
        if stamps:
            e(f"s_memrealtime s[{64+2*idx}:{65+2*idx}]")

    def emit_cpf():
        g.c("pull the kernel's own code into L2 (three 128-byte lines per workgroup); the value is not used")
        e(f"s_getpc_b64 s[94:95]")
        g.label("L_pc")
        e(f"s_lshr_b32 s{sT1}, s2, 3")
        e(f"s_mul_i32 s{sT1}, s{sT1}, 3")
        e(f"v_add_lshl_u32 v{Y+24}, v0, s{sT1}, 7")
        e(f"v_min_u32 v{Y+24}, L_last - L_pc, v{Y+24}")
        e(f"v_mov_b32 v{Y+25}, 0")
        e(f"v_lshl_add_u64 {vr(Y+24,2)}, {vr(Y+24,2)}, 0, s[94:95]")
        e(f"s_mov_b64 exec, 7")
        e(f"global_load_dword v{Y+26}, {vr(Y+24,2)}, off")
        e(f"s_mov_b64 exec, -1")
    def emit_e():
        e(f"v_and_b32 v{vT}, 15, v0                ; c")
        e(f"v_bfe_u32 v{vT+1}, v0, 4, 2            ; g")
        e(f"v_lshlrev_b32 v{vEF}, 4, v{vT+1}")
        e(f"v_lshl_add_u32 v{vEF}, v{vT}, 14, v{vEF}     ; c*16384 + g*16")
        e(f"s_mov_b64 s[{SE}:{SE+1}], s[46:47]")
        e(f"s_mov_b32 s{SE+2}, 0x40000")
        e(f"s_mov_b32 s{SE+3}, 0x20000")
        e(f"s_mov_b32 s{sTC}, 0")
        e(f"s_mov_b32 s{sKV0}, s{sOFF}")
        e(f"s_bfe_u32 s{sEOFF}, s{sOFF}, 0xe0008")
    if tight:
        e(f"s_load_dwordx16 s[40:55], s[0:1], 0")
        e(f"s_lshr_b32 s{sT0}, s2, 8")
        e(f"s_cbranch_scc1 L_end")
        stamp(0)
        if tight == 1:
            emit_cpf()
        g.c("lane offset: c*16 + h*256 + g*4096")
        e(f"v_lshlrev_b32 v{vX}, 4, v0             ; c*16 + g*256 + h*1024")
        e(f"v_lshrrev_b32 v{vT+2}, 6, v0           ; h")
        e(f"v_and_b32 v{vKV}, 0x300, v{vX}")
        e(f"v_and_b32 v{vX}, 0xf0, v{vX}")
        e(f"v_lshl_add_u32 v{vX}, v{vT+2}, 8, v{vX}      ; h*256 + c*16")
        e(f"v_lshl_add_u32 v{vKV}, v{vKV}, 4, v{vX}")
        e(f"s_brev_b32 s{SK+2}, 16                  ; 0x8000000")
        e(f"s_mov_b32 s{SK+3}, 0x20000")
        g.c("byte offset of a tile: bit 15 = slice bit 0, bits 20..21 = slice bits 1..2, bits 22.. = head,")
        g.c("bits 14, 16..19 = tile number (bits 16..19 XORed with the head: heads walk their tiles in different orders)")
        e(f"s_lshr_b32 s{sOFF}, s2, 1")
        e(f"s_lshl_b32 s{sOFF}, s{sOFF}, 20")
        e(f"s_and_b32 s{sT0}, s2, 1")
        e(f"s_lshl_b32 s{sT0}, s{sT0}, 15")
        e(f"s_or_b32 s{sOFF}, s{sOFF}, s{sT0}")
        e(f"s_and_b32 s{sROT}, s2, 0x78")
        e(f"s_lshl_b32 s{sROT}, s{sROT}, 13")
        e(f"s_or_b32 s{sOFF}, s{sOFF}, s{sROT}")
        e(f"s_waitcnt lgkmcnt(0)")
        e(f"s_mov_b64 s[{SK}:{SK+1}], s[42:43]")
    else:
        e(f"s_load_dwordx16 s[40:55], s[0:1], 0")
        e(f"s_cmp_ge_u32 s2, 256")
        e(f"s_cbranch_scc1 L_end")
        stamp(0)
        if cpf:
            g.c("pull the kernel's own code into L2 (three 128-byte lines per workgroup); the value is not used")
            e(f"s_getpc_b64 s[94:95]")
            g.label("L_pc")
            e(f"s_lshr_b32 s{sT0}, s2, 3")
            e(f"s_mul_i32 s{sT0}, s{sT0}, 3")
            e(f"v_add_lshl_u32 v{Y+24}, v0, s{sT0}, 7")
            e(f"v_min_u32 v{Y+24}, L_last - L_pc, v{Y+24}")
            e(f"v_mov_b32 v{Y+25}, 0")
            e(f"v_lshl_add_u64 {vr(Y+24,2)}, {vr(Y+24,2)}, 0, s[94:95]")
            e(f"s_mov_b64 exec, 7")
            e(f"global_load_dword v{Y+26}, {vr(Y+24,2)}, off")
            e(f"s_mov_b64 exec, -1")
        e(f"v_and_b32 v{vT}, 15, v0                ; c")
        e(f"v_bfe_u32 v{vT+1}, v0, 4, 2            ; g")
        e(f"v_lshrrev_b32 v{vT+2}, 6, v0           ; h")
        e(f"v_lshlrev_b32 v{vX}, 4, v{vT}")
        e(f"v_lshl_add_u32 v{vX}, v{vT+2}, 8, v{vX}      ; h*256 + c*16")
        e(f"v_lshl_add_u32 v{vKV}, v{vT+1}, 12, v{vX}    ; + g*4096")
        e(f"v_lshlrev_b32 v{vEF}, 4, v{vT+1}")
        e(f"v_lshl_add_u32 v{vEF}, v{vT}, 14, v{vEF}     ; c*16384 + g*16")
        e(f"s_mov_b32 s{SK+2}, 0x8000000")
        e(f"s_mov_b32 s{SK+3}, 0x20000")
        e(f"s_mov_b32 s{SE+2}, 0x40000")
        e(f"s_mov_b32 s{SE+3}, 0x20000")
        g.c("byte offset of a tile: bit 15 = slice bit 0, bits 20..21 = slice bits 1..2, bits 22.. = head,")
        g.c("bits 14, 16..19 = tile number (bits 16..19 XORed with the head: heads walk their tiles in different orders)")
        e(f"s_lshr_b32 s{sKV0}, s2, 1")
        e(f"s_lshl_b32 s{sKV0}, s{sKV0}, 20")
        e(f"s_and_b32 s{sT0}, s2, 1")
        e(f"s_lshl_b32 s{sT0}, s{sT0}, 15")
        e(f"s_or_b32 s{sKV0}, s{sKV0}, s{sT0}")
        e(f"s_bfe_u32 s{sROT}, s2, 0x40003")
        e(f"s_lshl_b32 s{sROT}, s{sROT}, 16")
        e(f"s_or_b32 s{sKV0}, s{sKV0}, s{sROT}")
        e(f"s_mov_b32 s{sTC}, 0")
        e(f"s_mov_b32 s{sOFF}, s{sKV0}")
        e(f"s_bfe_u32 s{sEOFF}, s{sOFF}, 0xe0008")
        e(f"s_waitcnt lgkmcnt(0)")
        e(f"s_mov_b64 s[{SK}:{SK+1}], s[42:43]")
        e(f"s_mov_b64 s[{SE}:{SE+1}], s[46:47]")

    DYN0 = 32 + NSV
    drains = []
    def request(T):
        e(f"v_mov_b32 v{vTK+(T&1)}, 1")
        e(f"s_mov_b64 exec, 1")
        g.vmem(f"buffer_atomic_add v{vTK+(T&1)}, off, s[{SW}:{SW+3}], s{sCT} sc0", f"R{T}")
        e(f"s_mov_b64 exec, -1")

    def boundary(T, n):
        if T < DYN0:
            if T == 32:
                e(f"s_mov_b32 s{sTC}, 0")
            else:
                e(f"s_add_u32 s{sTC}, s{sTC}, {'0x4000' if T & 1 else '0xc000'}")
            e(f"s_xor_b32 s{sOFF}, s{sTC}, s{sKV0}")
        else:
            g.wait({f"R{T}"})
            e(f"v_readfirstlane_b32 s{sT0}, v{vTK+(T&1)}")
            e(f"s_sub_u32 s{sT0}, s{sT0}, s{sTB}")
            e(f"s_cmp_ge_u32 s{sT0}, {LQ}")
            e(f"s_cselect_b32 s{sT0}, s{sNX}, s{sT0}")
            e(f"s_addc_u32 s{sNX}, s{sNX}, 0")
            e(f"s_cmp_ge_u32 s{sT0}, s{sLM}")
            lab = f"L_drain{len(drains)}"
            drains.append((lab, n, T * 8, list(g.vm)))
            e(f"s_cbranch_scc1 {lab}")
            e(f"s_and_b32 s{sT1}, s{sT0}, 3")
            e(f"s_lshl_b32 s{sOFF}, s{sT1}, 14")
            e(f"s_bfe_u32 s{sT1}, s{sT0}, 0x20002")
            e(f"s_lshl_b32 s{sT1}, s{sT1}, 20")
            e(f"s_or_b32 s{sOFF}, s{sOFF}, s{sT1}")
            e(f"s_lshr_b32 s{sT0}, s{sT0}, 4")
            e(f"s_add_u32 s{sT0}, s{sT0}, {NSV//2}")
            e(f"s_lshl_b32 s{sT0}, s{sT0}, 16")
            e(f"s_or_b32 s{sOFF}, s{sOFF}, s{sT0}")
            e(f"s_xor_b32 s{sOFF}, s{sOFF}, s{sVB}")
        e(f"s_bfe_u32 s{sEOFF}, s{sOFF}, 0xe0008")
        if T + 2 >= DYN0:
            request(T + 2)

    def issue(m, n=None):
        T, k = m >> 3, m & 7
        ph = int(T >= 32)
        if k == 0 and m > 0 and not hoist:
            boundary(T, n)
        if k == aslot:
            srd = SF if ph else SE
            g.vmem(f"buffer_load_dwordx4 {vr(vA+(T&1)*4,4)}, v{vEF}, s[{srd}:{srd+3}], s{sEOFF} offen", f"A{T}")
        srd = SV if ph else SK
        r = vR + (m % NR) * 4
        g.vmem(f"buffer_load_dwordx4 {vr(r,4)}, v{vKV}, s[{srd}:{srd+3}], s{sOFF} offen offset:{k*512}{polf}", f"L{m}")
        if k == 7 and hoist:
            boundary(T + 1, n)

    zero_tiles = set()
    def consume(n):
        if not (n & 1):
            return
        T, q = n >> 3, (n >> 1) & 3
        x0 = vR + ((n - 1) % NR) * 4
        x1 = vR + (n % NR) * 4
        def perm(i):
            sel = sHI if (i & 1) else sLO
            e(f"v_perm_b32 v{vB+i*4+q}, v{x1+(i>>1)}, v{x0+(i>>1)}, s{sel}")
        def mfma(i):
            acc = vACC + i * 4
            cin = "0" if T in zero_tiles else vr(acc, 4)
            e(f"v_mfma_f32_16x16x32_bf16 {vr(acc,4)}, {vr(vA+(T&1)*4,4)}, {vr(vB+i*4,4)}, {cin}")
        if q != 3:
            for i in range(8):
                perm(i)
            return
        perm(0); perm(1); perm(2)
        for i in range(8):
            mfma(i)
            if i + 3 < 8:
                perm(i + 3)

    def body(it, fills=()):
        st = [[list(gr), sl, sum(map(len, gr)), 0] for gr, sl in fills]
        for n in range(it * 16, it * 16 + 16):
            k = n & 15
            use = dynn or ((n + F) >> 3) < DYN0 - wide0
            save = list(g.vm)
            x = nb if use else 0
            if use and (nO >> k & 1):
                if not (nE >> k & 1):
                    ncond[0] += 1
                    e(f"s_bitcmp0_b32 s{sXC}, 0")
                    g.wait({f"L{n+x}"})
                    e(f"s_cbranch_scc1 L_w{ncond[0]}")
                g.wait({f"L{n+x+1}"})
                if not (nE >> k & 1):
                    g.label(f"L_w{ncond[0]}")
            else:
                g.wait({f"L{n+x}"})
            g.vm = save[save.index(f"L{n}") + 1:]
            issue(n + F, n)
            consume(n)
            for f in st:
                if (n & 15) in f[1]:
                    want = f[2] * (f[1].index(n & 15) + 1) / len(f[1])
                    while f[0] and f[3] < want:
                        grp = f[0].pop(0)
                        f[3] += len(grp)
                        for ins in grp:
                            if ins.startswith("buffer_load") and track:
                                g.vmem(ins, "X0")
                            else:
                                e(ins)
        assert not any(f[0] for f in st)

    for n in range(F):
        if tight and n == aslot:
            emit_e()
        issue(n)
    if t5:
        stamp(2)
    if tight == 2:
        emit_cpf()
    if nO != nE:
        e(f"s_getreg_b32 s{sXC}, hwreg(HW_REG_XCC_ID)")
    e(f"s_mov_b32 s{sLO}, 0x05040100")
    e(f"s_mov_b32 s{sHI}, 0x07060302")
    for r in range(0, 32, 2):
        e(f"v_mov_b64 {vr(vACC+r,2)}, 0")

    su = []
    su.append([f"v_readfirstlane_b32 s3, v{vT+2}",
               f"s_mov_b64 s[{SV}:{SV+1}], s[44:45]", f"s_mov_b32 s{SV+2}, 0x8000000", f"s_mov_b32 s{SV+3}, 0x20000",
               f"s_mov_b64 s[{SQ}:{SQ+1}], s[40:41]", f"s_mov_b32 s{SQ+2}, 0x4000", f"s_mov_b32 s{SQ+3}, 0x20000",
               f"s_lshr_b32 s{sHEAD}, s2, 3", f"s_lshl_b32 s{sOUT}, s{sHEAD}, 9",
               f"buffer_load_dwordx4 {vr(vQ,4)}, v{vX}, s[{SQ}:{SQ+3}], s{sOUT} offen"])
    su.append([f"s_mov_b64 s[{SW}:{SW+1}], s[54:55]", f"s_mov_b32 s{SW+2}, 0x20000000", f"s_mov_b32 s{SW+3}, 0x20000",
               f"s_lshl_b32 s{sT2}, s{sHEAD}, 10", f"s_add_u32 s{sT2}, s{sT2}, {hex(CT0)}",
               f"v_and_b32 v{vT+3}, 1, v0", f"v_lshlrev_b32 v{vT+3}, 9, v{vT+3}", f"s_mov_b64 exec, 3",
               f"buffer_load_dword v{vT+5}, v{vT+3}, s[{SW}:{SW+3}], s{sT2} offen sc1",
               f"s_mov_b64 exec, -1"])
    su.append([f"s_mov_b64 s[{SF}:{SF+1}], s[48:49]", f"s_mov_b32 s{SF+2}, 0x40000", f"s_mov_b32 s{SF+3}, 0x20000",
               f"s_lshl_b32 s{sT3}, s3, 9", f"s_add_u32 s{sCT}, s{sT2}, s{sT3}"])
    su2 = []
    su2.append([f"s_mov_b64 s[{SO}:{SO+1}], s[50:51]", f"s_mov_b32 s{SO+2}, 0x4000", f"s_mov_b32 s{SO+3}, 0x20000",
                f"s_mov_b32 s{sLE}, 0x3db8aa3b          ; log2(e)/16"])
    su2.append([f"s_lshl_b32 s{sVB}, s{sHEAD}, 22", f"s_or_b32 s{sVB}, s{sVB}, s{sROT}"])
    su2.append([f"s_lshl_b32 s{sWSL}, s2, 11",
                f"s_lshl_b32 s{sSS}, s2, 8", f"s_add_u32 s{sSS}, s{sSS}, {hex(SC0)}",
                f"s_lshl_b32 s{sSB}, s{sHEAD}, 11", f"s_add_u32 s{sSB}, s{sSB}, {hex(SC0)}"])
    su2.append([f"v_lshlrev_b32 v{vX+1}, 7, v{vT}",
                f"v_lshl_add_u32 v{vX+1}, v{vT+1}, 5, v{vX+1}"])
    su2.append([f"v_lshlrev_b32 v{vX+2}, 7, v{vT+2}", f"v_lshl_add_u32 v{vX+2}, v{vT+1}, 5, v{vX+2}",
                f"v_lshl_add_u32 v{vX+2}, v{vT}, 4, v{vX+2}"])
    su2.append([f"v_lshlrev_b32 v{vX+3}, 4, v0",
                f"v_lshl_add_u32 v{vX+5}, v{vT+1}, 2, v{vX}"])
    su2.append([f"s_lshl_b32 s{sT3}, s3, 2", f"s_add_u32 s{sT3}, s{sT3}, s{sHEAD}", f"s_xor_b32 s{sT3}, s{sT3}, s2",
                f"s_and_b32 s{sFIN}, s{sT3}, 7",
                f"s_mov_b32 s{sNX}, {LQ}", f"s_cmp_eq_u32 s{sFIN}, 0", f"s_cselect_b32 s{sLM}, {8*ND}, {LQ}"])
    su2.append([f"s_xor_b32 s{sOUT+k}, s{sWSL}, {k << 11}" for k in range(1, 5)])
    su2.append([f"s_xor_b32 s{sOUT+k}, s{sWSL}, {k << 11}" for k in range(5, 8)])

    def shift(vm, dit):
        return [f"{t[0]}{int(t[1:]) + dit*(16 if t[0] == 'L' else 2)}" for t in vm]
    def loop(name, first, last, evs):
        e(f"s_mov_b32 s{sIT}, {first}")
        entry = list(g.vm)
        g.label(f"L_{name}")
        body(first)
        assert g.vm == shift(entry, 1), (g.vm, entry)
        for it, lab in evs:
            assert first <= it <= last
            e(f"s_cmp_eq_u32 s{sIT}, {it}")
            e(f"s_cbranch_scc1 L_{lab}")
        g.label(f"L_{name}_back")
        if bar == 1:
            e("s_barrier")
        elif bar > 1:
            e(f"s_and_b32 s{sT0}, s{sIT}, {bar - 1}")
            e(f"s_cbranch_scc1 L_{name}_nb")
            e("s_barrier")
            g.label(f"L_{name}_nb")
        e(f"s_add_u32 s{sIT}, s{sIT}, 1")
        e(f"s_cmp_le_u32 s{sIT}, {last}")
        e(f"s_cbranch_scc1 L_{name}")
        g.vm = shift(entry, last - first + 1)

    g.c("---- K phase: one iteration consumes two tiles")
    loop("k", 0, 14, [])
    g.c("---- last K iteration (starts loading V); set-up for the second half rides along")
    body(15, [(su[:1], [0]), (su[1:2], [1]), (su[2:], [2]), (su2, [6, 8, 10, 14])])
    assert not any(t[0] == "X" for t in g.vm)
    if not t5 and not t3:
        stamp(2)
    S4 = P
    sc = []
    for i in range(8):
        qr = vQ + (i >> 1)
        grp = [f"v_and_b32 v{vT}, 0xffff0000, v{qr}" if i & 1 else f"v_lshlrev_b32 v{vT}, 16, v{qr}"]
        for r in range(4):
            grp.append(f"{'v_fmac_f32' if i else 'v_mul_f32'} v{S4+r}, v{vT}, v{vACC+i*4+r}")
        sc.append(grp)
    sc.append([f"v_readlane_b32 s{sTAG}, v{vT+5}, 0", f"v_readlane_b32 s{sTB}, v{vT+5}, s3"])
    sc2 = [[f"s_xor_b32 s{sTAG}, s{sTAG}, 0x5bd1e995"]]
    for sh in (8, 4, 2, 1):
        sc2.append([f"v_add_f32_dpp v{S4+r}, v{S4+r}, v{S4+r} row_ror:{sh} row_mask:0xf bank_mask:0xf" for r in range(4)])
    sc2.append([f"s_mov_b32 vcc_lo, 0x00020002", f"s_mov_b32 vcc_hi, 0x00020002",
                f"v_cndmask_b32 v{Y}, v{S4}, v{S4+2}, vcc", f"v_mov_b32 v{Y+1}, s{sTAG}",
                f"v_cndmask_b32 v{Y+2}, v{S4+1}, v{S4+3}, vcc", f"v_mov_b32 v{Y+3}, s{sTAG}"])
    sc2.append([f"s_mov_b32 exec_lo, 0x00030003", f"s_mov_b32 exec_hi, 0x00030003",
                f"buffer_store_dwordx4 {vr(Y,4)}, v{vX+2}, s[{SW}:{SW+3}], s{sSS} offen sc1",
                f"s_mov_b64 exec, -1"])
    g.c("---- first V iteration; computes and publishes the partial scores of this wave")
    zero_tiles.add(32)
    body(16, [(sc, [0, 2, 4, 6]), (sc2, [8, 10, 14])])

    def fetch(tag=None):
        for k in range(1, 8):
            ins = f"buffer_load_dwordx4 {vr(Y+4*(k-1),4)}, v{vX+3}, s[{SW}:{SW+3}], s{sOUT+k} offen sc1"
            if tag:
                g.vmem(ins, tag)
            else:
                e(ins)
    fdr = {}
    def drain(n, m):
        for x in range(n, m):
            if x == m - pre:
                e(f"s_cmp_eq_u32 s{sFIN}, 0")
                e(f"s_cbranch_scc1 L_fdrain{m & 15}")
                fdr[m & 15] = (x, m, list(g.vm))
            if x & 1:
                g.wait({f"L{x}"})
                consume(x)
    def check(regs):
        e(f"v_xor_b32 v{vT}, s{sTAG}, v{regs[0]}")
        e(f"v_xor_b32 v{vT+1}, s{sTAG}, v{regs[1]}")
        for i, r in enumerate(regs[2:]):
            e(f"v_bitop3_b32 v{vT+(i&1)}, v{vT+(i&1)}, v{r}, s{sTAG} bitop3:0xf6   ; a | (b ^ c)")
        e(f"v_or_b32 v{vT}, v{vT}, v{vT+1}")
        e(f"v_cmp_ne_u32 vcc, 0, v{vT}")

    hs = 1 if hoist else 0
    lastplain = 17
    while ((lastplain + 1) * 16 + 15 + F + hs) >> 3 < DYN0 - 2:
        lastplain += 1
    assert dQ >= 1
    g.c("---- V phase")
    loop("v", 17, lastplain, [(lastplain - dQ, "evQ")])
    if t3:
        stamp(2)
    g.c("the scores of all 16 waves of this head were requested more than one window ago")
    g.label("L_chkQ")
    check([Y + 5, Y + 7, Y + 9, Y + 11])
    e(f"s_cbranch_vccnz L_retryQ")
    g.label("L_okQ")
    sm = []
    sm.append([f"v_add_f32_dpp v{P+r}, v{Y+4+2*r}, v{Y+4+2*r} row_ror:8 row_mask:0xf bank_mask:0xf" for r in range(4)])
    for sh in (4, 2, 1):
        sm.append([f"v_add_f32_dpp v{P+r}, v{P+r}, v{P+r} row_ror:{sh} row_mask:0xf bank_mask:0xf" for r in range(4)])
    sm.append([f"v_max3_f32 v{vT}, v{P}, v{P+1}, v{P+2}", f"v_max_f32 v{vT}, v{vT}, v{P+3}",
               f"v_mov_b32 v{vT+1}, v{vT}", "s_nop 1", f"v_permlane32_swap_b32 v{vT}, v{vT+1}",
               f"v_max_f32 v{vT}, v{vT}, v{vT+1}"])
    sm.append([f"v_mov_b32 v{vT+1}, v{vT}", "s_nop 1", f"v_permlane16_swap_b32 v{vT}, v{vT+1}",
               f"v_max_f32 v{vT}, v{vT}, v{vT+1}"])
    sm.append([f"v_sub_f32 v{P+r}, v{P+r}, v{vT}" for r in range(4)])
    sm.append([f"v_mul_f32 v{P+r}, s{sLE}, v{P+r}" for r in range(4)])
    sm.append([f"v_exp_f32 v{P+r}, v{P+r}" for r in range(4)] + ["s_nop 0"])
    sm.append([f"v_add_f32 v{vT}, v{P}, v{P+1}", f"v_add_f32 v{vT+1}, v{P+2}, v{P+3}", f"v_add_f32 v{vT}, v{vT}, v{vT+1}",
               f"v_mov_b32 v{vT+1}, v{vT}", "s_nop 1", f"v_permlane32_swap_b32 v{vT}, v{vT+1}",
               f"v_add_f32 v{vT}, v{vT}, v{vT+1}"])
    sm.append([f"v_mov_b32 v{vT+1}, v{vT}", "s_nop 1", f"v_permlane16_swap_b32 v{vT}, v{vT+1}",
               f"v_add_f32 v{vT}, v{vT}, v{vT+1}", f"v_rcp_f32 v{vT}, v{vT}", "s_nop 0"])
    sm.append([f"v_mul_f32 v{P+r}, v{P+r}, v{vT}" for r in range(4)])
    it = lastplain + 1
    g.c("softmax over the 16 scores (4 registers x 4 lane groups), spread over this iteration; first tickets")
    body(it, [(sm, [0, 2, 4, 6, 8, 10, 12, 14])])
    assert not drains
    it += 1
    g.c("---- tiles by ticket")
    while True:
        entry = list(g.vm)
        pos, nd = len(g.lines), len(drains)
        body(it)
        it += 1
        if g.vm == shift(entry, 1) and len(drains) == nd + 2:
            g.lines.insert(pos, "L_dyn:")
            break
    e(f"s_branch L_dyn")
    seen = {}
    for lab, n, m, vm in drains:
        g.vm = list(vm)
        start = len(g.lines)
        drain(n, m)
        code = g.lines[start:]
        del g.lines[start:]
        seen.setdefault("\n".join(code), []).append(lab)
    g.c("---- no tile left: consume what is in flight (the finishing wave already asks for its peers' partials)")
    for par, (x0, m, vm) in fdr.items():
        g.vm = list(vm)
        g.label(f"L_fdrain{par}")
        fetch("Y")
        for x in range(x0, m):
            if x & 1:
                g.wait({f"L{x}"})
                consume(x)
        e("s_branch L_epi")
    keys = list(seen)
    for i, key in enumerate(keys):
        for lab in seen[key]:
            g.label(lab)
        g.lines.append(key)
        if i + 1 < len(keys):
            e("s_branch L_epi")

    ytags = [Y + 1 + 2 * i for i in range(14)]
    g.c("---- o partial: sum over r of p[r] * acc[r][d]; lane (c, g) ends up with columns 8c + 2g, 8c + 2g + 1")
    g.label("L_epi")
    t = vR
    e(f"v_mov_b32 v{t+9}, s{sTAG}")
    for i in range(8):
        a = vACC + i * 4
        e(f"v_mul_f32 v{t+i}, v{P}, v{a}")
        e(f"v_fmac_f32 v{t+i}, v{P+1}, v{a+1}")
        e(f"v_fmac_f32 v{t+i}, v{P+2}, v{a+2}")
        e(f"v_fmac_f32 v{t+i}, v{P+3}, v{a+3}")
    e(f"v_mov_b32 v{t+11}, s{sTAG}")
    e(f"s_mov_b32 s{sCNT}, 0")
    for m in range(4):
        e(f"v_permlane32_swap_b32 v{t+m}, v{t+m+4}")
    for m in range(4):
        e(f"v_add_f32 v{t+m}, v{t+m}, v{t+m+4}")
    e(f"s_cmp_eq_u32 s{sFIN}, 0")
    e("s_nop 0")
    for m in range(2):
        e(f"v_permlane16_swap_b32 v{t+m}, v{t+m+2}")
    for m in range(2):
        e(f"v_add_f32 v{t+8+2*m}, v{t+m}, v{t+m+2}")
    stamp(1)
    e(f"s_cbranch_scc1 L_look")
    e(f"buffer_store_dwordx4 {vr(t+8,4)}, v{vX+3}, s[{SW}:{SW+3}], s{sWSL} offen sc1")
    e(f"s_branch L_exit" if stamps else "s_endpgm")
    g.label("L_again")
    fetch()
    g.label("L_look")
    e(f"s_add_u32 s{sCNT}, s{sCNT}, 1")
    e(f"s_cmp_ge_u32 s{sCNT}, {hex(SPIN)}")
    e(f"s_waitcnt vmcnt(0)")
    check(ytags)
    e(f"s_cbranch_scc1 L_fin")
    e(f"s_cbranch_vccnz L_again")
    g.label("L_fin")
    y = lambda k, m: Y + 4 * (k - 1) + 2 * m
    for m in range(2):
        e(f"v_add_f32 v{y(2,m)}, v{y(2,m)}, v{y(3,m)}")
        e(f"v_add_f32 v{y(4,m)}, v{y(4,m)}, v{y(5,m)}")
        e(f"v_add_f32 v{y(6,m)}, v{y(6,m)}, v{y(7,m)}")
        e(f"v_add_f32 v{t+m}, v{t+8+2*m}, v{y(1,m)}")
    for m in range(2):
        e(f"v_add_f32 v{y(4,m)}, v{y(4,m)}, v{y(6,m)}")
        e(f"v_add_f32 v{t+m}, v{t+m}, v{y(2,m)}")
    for m in range(2):
        e(f"v_add_f32 v{t+m}, v{t+m}, v{y(4,m)}")
    e(f"v_cvt_pk_bf16_f32 v{t}, v{t}, v{t+1}")
    e(f"buffer_store_dword v{t}, v{vX+5}, s[{SO}:{SO+3}], s{sOUT} offen")
    g.label("L_exit")
    if stamps:
        e("s_waitcnt vmcnt(0)")
        e("s_memrealtime s[70:71]")
        e("s_waitcnt lgkmcnt(0)")
        e("s_mov_b64 exec, 1")
        for i in range(4):
            e(f"v_mov_b32 v{8+i}, s{64+2*i}")
        e(f"s_lshl_b32 s56, s2, 5")
        e(f"s_lshl_b32 s57, s3, 4")
        e(f"s_add_u32 s56, s56, s57")
        e(f"s_add_u32 s56, s56, {1<<20}")
        e(f"buffer_store_dwordx4 v[8:11], off, s[{SW}:{SW+3}], s56")
    g.label("L_end")
    e("s_endpgm")

    def emitQ():
        e(f"buffer_load_dwordx4 {vr(Y+4,4)}, v{vX+1}, s[{SW}:{SW+3}], s{sSB} offen sc1")
        e(f"buffer_load_dwordx4 {vr(Y+8,4)}, v{vX+1}, s[{SW}:{SW+3}], s{sSB} offen offset:16 sc1")
    g.c("---- out of line: fetch the partial scores of the head (not counted: waits only get stricter)")
    g.label("L_evQ")
    emitQ()
    e(f"s_mov_b32 s{sCNT}, 0")
    e(f"s_branch L_v_back")
    g.label("L_retryQ")
    emitQ()
    e(f"s_add_u32 s{sCNT}, s{sCNT}, 1")
    e(f"s_cmp_lt_u32 s{sCNT}, {hex(SPIN)}")
    e(f"s_waitcnt vmcnt(0)")
    e(f"s_cbranch_scc1 L_chkQ")
    g.label("L_last")
    e(f"s_branch L_okQ")

    out = HEADER
    out += f"; @launch grid=(256,1,1) block=(128,1,1) lds=0\n"
    out += DOC
    out += f""".amdgcn_target "amdgcn-amd-amdhsa--gfx950"
.text
.globl {NAME}
.p2align 8
.type {NAME},@function
{NAME}:
"""
    out += g.text()
    out += f""".section .rodata,"a"
.p2align 6
.amdhsa_kernel {NAME}
  .amdhsa_next_free_vgpr {NV}
  .amdhsa_next_free_sgpr 96
  .amdhsa_accum_offset {NV}
  .amdhsa_group_segment_fixed_size 0
  .amdhsa_kernarg_size 64
  .amdhsa_user_sgpr_count 2
  .amdhsa_user_sgpr_kernarg_segment_ptr 1
  .amdhsa_system_sgpr_workgroup_id_x 1
  .amdhsa_float_denorm_mode_32 3
.end_amdhsa_kernel
"""
    return out

if __name__ == "__main__":
    import ast
    kw = {}
    for a in sys.argv[2:]:
        k, v = a.split("=")
        try: kw[k] = ast.literal_eval(v)
        except Exception: kw[k] = v
    open(sys.argv[1], "w").write(gen(**kw))
```

```python
import sys
from gen import G, vr, HEADER, NAME

DOC = """;
;
; A tile is 32 rows: 8 x buffer_load_dwordx4 (lane group g = rows 8g..8g+7, lane c = 16-byte column chunk), transposed
; Hand-offs go through d_ws as {value, tag} pairs (write-through stores, L1-bypassing loads).  The tag and the first
"""

def gen(F=11, pol="nt", stamps=False, dQ=2, aslot=6, ND=4, SPIN=0x200000, pre=6, R=2, hoist=True, track=True, cpf=1, tight=0, t5=False, nE=0, nO=0x0f0f, t3=False, dynn=False, nb=0, wide0=2, bar=0, RC=4, fpos=4, r1=2, W2=32, LF=None, npl=1, sep=False, w0=False, bfirst=True):
    g = G()
    e = g.e
    SK, SV, SE, SF, SQ, SO, SW = 4, 8, 12, 16, 20, 24, 32
    sTAG, sTB, sLE = 28, 29, 31
    sLO, sHI, sOFF, sEOFF = 36, 37, 38, 39
    sT0, sT1, sT2, sT3 = 56, 57, 58, 59
    sWSL, sHEAD, sCNT, sIT = 60, 61, 62, 63
    sKV0, sTC, sROT = 72, 73, 74
    sSB, sSS, sCT, sVB = 75, 76, 77, 78
    sOUT = 80
    sNX, sLM, sFIN = 88, 89, 90
    vKV, vEF = 1, 2
    vT = 4
    vX = 10
    vQ = 16
    vTK = 16
    P = 20
    vA = 24
    vACC = 32
    vB = 64
    vR = 96
    NR = 16
    Y = vR + NR * 4
    vC = Y + 28
    vCA = vC + 32
    vCC = vCA + 16
    NV = vCC + 16
    vKC = 3
    sPO, sCI = 93, 83
    sCO = 92
    R = 2 * RC
    assert 2 <= RC <= 6
    assert 9 <= F <= 14 and aslot >= F - 8 and ND % 2 == 0 and ND >= 2 and (nE & ~nO) == 0
    sXC = 91
    ncond = [0]
    NSV = 32 - ND
    LQ = 8 * ND - R
    PC0 = NSV // 2
    if sep:
        assert RC == 4
        LQ = 8 * ND
        NSV -= 1
    SC0, CT0 = 0x80000, 0x90000
    polf = " " + pol if pol else ""

    def stamp(idx):
        if stamps:
            e(f"s_memrealtime s[{64+2*idx}:{65+2*idx}]")

    def emit_cpf():
        g.c("pull the kernel's own code into L2 (four 128-byte lines per wave); the value is not used")
        e(f"s_getpc_b64 s[94:95]")
        g.label("L_pc")
        e(f"s_lshr_b32 s{sT1}, s2, 3")
        e(f"s_mul_i32 s{sT1}, s{sT1}, 3")
        e(f"v_add_lshl_u32 v{Y+24}, v0, s{sT1}, 7")
        e(f"v_min_u32 v{Y+24}, L_last - L_pc, v{Y+24}")
        e(f"v_mov_b32 v{Y+25}, 0")
        e(f"v_lshl_add_u64 {vr(Y+24,2)}, {vr(Y+24,2)}, 0, s[94:95]")
        e(f"s_mov_b64 exec, 15")
        e(f"global_load_dword v{Y+26}, {vr(Y+24,2)}, off")
        e(f"s_mov_b64 exec, -1")
    def emit_e():
        e(f"v_and_b32 v{vT}, 15, v0                ; c")
        e(f"v_bfe_u32 v{vT+1}, v0, 4, 2            ; g")
        e(f"v_lshlrev_b32 v{vEF}, 4, v{vT+1}")
        e(f"v_lshl_add_u32 v{vEF}, v{vT}, 14, v{vEF}     ; c*16384 + g*16")
        e(f"s_mov_b64 s[{SE}:{SE+1}], s[46:47]")
        e(f"s_mov_b32 s{SE+2}, 0x40000")
        e(f"s_mov_b32 s{SE+3}, 0x20000")
        e(f"s_mov_b32 s{sTC}, 0")
        e(f"s_mov_b32 s{sKV0}, s{sOFF}")
        e(f"s_bfe_u32 s{sEOFF}, s{sOFF}, 0xe0008")
    if tight:
        e(f"s_load_dwordx16 s[40:55], s[0:1], 0")
        e(f"s_lshr_b32 s{sT0}, s2, 8")
        e(f"s_cbranch_scc1 L_end")
        stamp(0)
        if tight == 1:
            emit_cpf()
        g.c("lane offset: c*16 + h*256 + g*4096")
        e(f"v_lshlrev_b32 v{vX}, 4, v0             ; c*16 + g*256 + h*1024")
        e(f"v_lshrrev_b32 v{vT+2}, 6, v0           ; h")
        e(f"v_and_b32 v{vKV}, 0x300, v{vX}")
        e(f"v_and_b32 v{vX}, 0xf0, v{vX}")
        e(f"v_lshl_add_u32 v{vX}, v{vT+2}, 8, v{vX}      ; h*256 + c*16")
        e(f"v_lshl_add_u32 v{vKV}, v{vKV}, 4, v{vX}")
        e(f"s_brev_b32 s{SK+2}, 16                  ; 0x8000000")
        e(f"s_mov_b32 s{SK+3}, 0x20000")
        g.c("byte offset of a tile: bit 15 = slice bit 0, bits 20..21 = slice bits 1..2, bits 22.. = head,")
        g.c("bits 14, 16..19 = tile number (bits 16..19 XORed with the head: heads walk their tiles in different orders)")
        e(f"s_lshr_b32 s{sOFF}, s2, 1")
        e(f"s_lshl_b32 s{sOFF}, s{sOFF}, 20")
        e(f"s_and_b32 s{sT0}, s2, 1")
        e(f"s_lshl_b32 s{sT0}, s{sT0}, 15")
        e(f"s_or_b32 s{sOFF}, s{sOFF}, s{sT0}")
        e(f"s_and_b32 s{sROT}, s2, 0x78")
        e(f"s_lshl_b32 s{sROT}, s{sROT}, 13")
        e(f"s_or_b32 s{sOFF}, s{sOFF}, s{sROT}")
        e(f"s_waitcnt lgkmcnt(0)")
        e(f"s_mov_b64 s[{SK}:{SK+1}], s[42:43]")
    else:
        e(f"s_load_dwordx16 s[40:55], s[0:1], 0")
        e(f"s_cmp_ge_u32 s2, 256")
        e(f"s_cbranch_scc1 L_end")
        stamp(0)
        if cpf:
            g.c("pull the kernel's own code into L2 (four 128-byte lines per wave); the value is not used")
            e(f"s_getpc_b64 s[94:95]")
            g.label("L_pc")
            e(f"s_lshr_b32 s{sT0}, s2, 3")
            e(f"s_mul_i32 s{sT0}, s{sT0}, 4")
            e(f"v_add_lshl_u32 v{Y+24}, v0, s{sT0}, 7")
            e(f"v_min_u32 v{Y+24}, L_last - L_pc, v{Y+24}")
            e(f"v_mov_b32 v{Y+25}, 0")
            e(f"v_lshl_add_u64 {vr(Y+24,2)}, {vr(Y+24,2)}, 0, s[94:95]")
            e(f"s_mov_b64 exec, 15")
            e(f"global_load_dword v{Y+26}, {vr(Y+24,2)}, off")
            e(f"s_mov_b64 exec, -1")
        e(f"v_and_b32 v{vT}, 15, v0                ; c")
        e(f"v_bfe_u32 v{vT+1}, v0, 4, 2            ; g")
        e(f"v_lshrrev_b32 v{vT+2}, 6, v0           ; h")
        e(f"v_lshlrev_b32 v{vX}, 4, v{vT}")
        e(f"v_lshl_add_u32 v{vX}, v{vT+2}, 8, v{vX}      ; h*256 + c*16")
        e(f"v_lshl_add_u32 v{vKV}, v{vT+1}, 12, v{vX}    ; + g*4096")
        e(f"v_lshlrev_b32 v{vEF}, 4, v{vT+1}")
        e(f"v_lshl_add_u32 v{vEF}, v{vT}, 14, v{vEF}     ; c*16384 + g*16")
        e(f"s_mov_b32 s{SK+2}, 0x8000000")
        e(f"s_mov_b32 s{SK+3}, 0x20000")
        e(f"s_mov_b32 s{SE+2}, 0x40000")
        e(f"s_mov_b32 s{SE+3}, 0x20000")
        g.c("byte offset of a tile: bit 15 = slice bit 0, bits 20..21 = slice bits 1..2, bits 22.. = head,")
        g.c("bits 14, 16..19 = tile number (bits 16..19 XORed with the head: heads walk their tiles in different orders)")
        e(f"s_lshr_b32 s{sKV0}, s2, 1")
        e(f"s_lshl_b32 s{sKV0}, s{sKV0}, 20")
        e(f"s_and_b32 s{sT0}, s2, 1")
        e(f"s_lshl_b32 s{sT0}, s{sT0}, 15")
        e(f"s_or_b32 s{sKV0}, s{sKV0}, s{sT0}")
        e(f"s_bfe_u32 s{sROT}, s2, 0x40003")
        e(f"s_lshl_b32 s{sROT}, s{sROT}, 16")
        e(f"s_or_b32 s{sKV0}, s{sKV0}, s{sROT}")
        e(f"s_mov_b32 s{sTC}, 0")
        e(f"s_mov_b32 s{sOFF}, s{sKV0}")
        e(f"s_bfe_u32 s{sEOFF}, s{sOFF}, 0xe0008")
        e(f"s_waitcnt lgkmcnt(0)")
        e(f"s_mov_b64 s[{SK}:{SK+1}], s[42:43]")
        e(f"s_mov_b64 s[{SE}:{SE+1}], s[46:47]")

    DYN0 = 32 + NSV
    drains = []
    def request(T):
        e(f"v_mov_b32 v{vTK+(T&1)}, 1")
        e(f"s_mov_b64 exec, 1")
        g.vmem(f"buffer_atomic_add v{vTK+(T&1)}, off, s[{SW}:{SW+3}], s{sCT} sc0", f"R{T}")
        e(f"s_mov_b64 exec, -1")

    def boundary(T, n):
        if T < DYN0:
            if T == 32:
                e(f"s_mov_b32 s{sTC}, 0")
            else:
                e(f"s_add_u32 s{sTC}, s{sTC}, {'0x4000' if T & 1 else '0xc000'}")
            e(f"s_xor_b32 s{sOFF}, s{sTC}, s{sKV0}")
        else:
            g.wait({f"R{T}"})
            e(f"v_readfirstlane_b32 s{sT0}, v{vTK+(T&1)}")
            e(f"s_sub_u32 s{sT0}, s{sT0}, s{sTB}")
            if LF is None:
                e(f"s_cmp_ge_u32 s{sT0}, {LQ}")
            else:
                e(f"s_cmp_ge_u32 s{sT0}, s{sLM}")
            lab = f"L_drain{len(drains)}"
            drains.append((lab, n, T * 8, list(g.vm)))
            e(f"s_cbranch_scc1 {lab}")
            if LF is not None:
                e(f"s_add_u32 s{sT0}, s{sT0}, s{sPO}")
            e(f"s_and_b32 s{sT1}, s{sT0}, 3")
            e(f"s_lshl_b32 s{sOFF}, s{sT1}, 14")
            e(f"s_bfe_u32 s{sT1}, s{sT0}, 0x20002")
            e(f"s_lshl_b32 s{sT1}, s{sT1}, 20")
            e(f"s_or_b32 s{sOFF}, s{sOFF}, s{sT1}")
            e(f"s_lshr_b32 s{sT0}, s{sT0}, 4")
            e(f"s_add_u32 s{sT0}, s{sT0}, {PC0}")
            e(f"s_lshl_b32 s{sT0}, s{sT0}, 16")
            e(f"s_or_b32 s{sOFF}, s{sOFF}, s{sT0}")
            e(f"s_xor_b32 s{sOFF}, s{sOFF}, s{sVB}")
        e(f"s_bfe_u32 s{sEOFF}, s{sOFF}, 0xe0008")
        if T + 2 >= DYN0:
            request(T + 2)

    def issue(m, n=None):
        T, k = m >> 3, m & 7
        ph = int(T >= 32)
        if k == 0 and m > 0 and not hoist:
            boundary(T, n)
        if k == aslot:
            srd = SF if ph else SE
            g.vmem(f"buffer_load_dwordx4 {vr(vA+(T&1)*4,4)}, v{vEF}, s[{srd}:{srd+3}], s{sEOFF} offen", f"A{T}")
        srd = SV if ph else SK
        r = vR + (m % NR) * 4
        g.vmem(f"buffer_load_dwordx4 {vr(r,4)}, v{vKV}, s[{srd}:{srd+3}], s{sOFF} offen offset:{k*512}{polf}", f"L{m}")
        if k == 7 and hoist:
            boundary(T + 1, n)

    zero_tiles = set()
    def consume(n):
        if not (n & 1):
            return
        T, q = n >> 3, (n >> 1) & 3
        x0 = vR + ((n - 1) % NR) * 4
        x1 = vR + (n % NR) * 4
        def perm(i):
            sel = sHI if (i & 1) else sLO
            e(f"v_perm_b32 v{vB+i*4+q}, v{x1+(i>>1)}, v{x0+(i>>1)}, s{sel}")
        def mfma(i):
            acc = vACC + i * 4
            cin = "0" if T in zero_tiles else vr(acc, 4)
            e(f"v_mfma_f32_16x16x32_bf16 {vr(acc,4)}, {vr(vA+(T&1)*4,4)}, {vr(vB+i*4,4)}, {cin}")
        if q != 3:
            for i in range(8):
                perm(i)
            return
        perm(0); perm(1); perm(2)
        for i in range(8):
            mfma(i)
            if i + 3 < 8:
                perm(i + 3)

    def body(it, fills=()):
        st = [[list(gr), sl, sum(map(len, gr)), 0] for gr, sl in fills]
        for n in range(it * 16, it * 16 + 16):
            k = n & 15
            use = dynn or ((n + F) >> 3) < DYN0 - wide0
            save = list(g.vm)
            x = nb if use else 0
            if use and (nO >> k & 1):
                if not (nE >> k & 1):
                    ncond[0] += 1
                    e(f"s_bitcmp0_b32 s{sXC}, 0")
                    if not bfirst:
                        g.wait({f"L{n+x}"})
                    e(f"s_cbranch_scc1 L_w{ncond[0]}")
                g.wait({f"L{n+x+1}"})
                if not (nE >> k & 1):
                    g.label(f"L_w{ncond[0]}")
                    if bfirst:
                        g.vm = list(save)
                        g.wait({f"L{n+x}"})
            else:
                g.wait({f"L{n+x}"})
            g.vm = save[save.index(f"L{n}") + 1:]
            issue(n + F, n)
            consume(n)
            for f in st:
                if (n & 15) in f[1]:
                    want = f[2] * (f[1].index(n & 15) + 1) / len(f[1])
                    while f[0] and f[3] < want:
                        grp = f[0].pop(0)
                        f[3] += len(grp)
                        for ins in grp:
                            if ins.startswith("buffer_load") and track:
                                g.vmem(ins, "X0")
                            else:
                                e(ins)
        assert not any(f[0] for f in st)

    for n in range(F):
        if tight and n == aslot:
            emit_e()
        issue(n)
    if t5:
        stamp(2)
    if tight == 2:
        emit_cpf()
    if nO != nE:
        e(f"s_getreg_b32 s{sXC}, hwreg(HW_REG_XCC_ID)")
    e(f"s_mov_b32 s{sLO}, 0x05040100")
    e(f"s_mov_b32 s{sHI}, 0x07060302")
    for r in range(0, 32, 2):
        e(f"v_mov_b64 {vr(vACC+r,2)}, 0")

    su = []
    su.append([f"v_readfirstlane_b32 s3, v{vT+2}",
               f"s_mov_b64 s[{SV}:{SV+1}], s[44:45]", f"s_mov_b32 s{SV+2}, 0x8000000", f"s_mov_b32 s{SV+3}, 0x20000",
               f"s_mov_b64 s[{SQ}:{SQ+1}], s[40:41]", f"s_mov_b32 s{SQ+2}, 0x4000", f"s_mov_b32 s{SQ+3}, 0x20000",
               f"s_lshr_b32 s{sHEAD}, s2, 3", f"s_lshl_b32 s{sOUT}, s{sHEAD}, 9",
               f"buffer_load_dwordx4 {vr(vQ,4)}, v{vX}, s[{SQ}:{SQ+3}], s{sOUT} offen"])
    su.append([f"s_mov_b64 s[{SW}:{SW+1}], s[54:55]", f"s_mov_b32 s{SW+2}, 0x20000000", f"s_mov_b32 s{SW+3}, 0x20000",
               f"s_lshl_b32 s{sT2}, s{sHEAD}, 10", f"s_add_u32 s{sT2}, s{sT2}, {hex(CT0)}",
               f"v_and_b32 v{vT+3}, 3, v0", f"v_lshlrev_b32 v{vT+3}, 8, v{vT+3}", f"s_mov_b64 exec, {5 if LF is None else 15}",
               f"buffer_load_dword v{vT+5}, v{vT+3}, s[{SW}:{SW+3}], s{sT2} offen sc1",
               f"s_mov_b64 exec, -1"])
    su.append([f"s_mov_b64 s[{SF}:{SF+1}], s[48:49]", f"s_mov_b32 s{SF+2}, 0x40000", f"s_mov_b32 s{SF+3}, 0x20000",
               f"s_lshr_b32 s{sT3}, s2, 1", f"s_xor_b32 s{sT3}, s{sT3}, s{sHEAD}",
               f"s_and_b32 s{sFIN}, s{sT3}, 1              ; 0: this workgroup finishes 64 columns",
               f"s_lshl_b32 s{sCI}, s3, 1"] + ([] if LF is None else [f"s_or_b32 s{sCI}, s{sCI}, s{sFIN}"]) +
              [f"s_lshl_b32 s{sT3}, s{sCI}, 8", f"s_add_u32 s{sCT}, s{sT2}, s{sT3}         ; counter of this wave's pool"])
    su2 = []
    su2.append([f"s_mov_b64 s[{SO}:{SO+1}], s[50:51]", f"s_mov_b32 s{SO+2}, 0x4000", f"s_mov_b32 s{SO+3}, 0x20000",
                f"s_mov_b32 s{sLE}, 0x3db8aa3b          ; log2(e)/16"])
    su2.append([f"s_lshl_b32 s{sVB}, s{sHEAD}, 22", f"s_or_b32 s{sVB}, s{sVB}, s{sROT}"])
    su2.append([f"s_lshl_b32 s{sWSL}, s2, 11",
                f"s_lshl_b32 s{sSS}, s2, 8", f"s_add_u32 s{sSS}, s{sSS}, {hex(SC0)}",
                f"s_lshl_b32 s{sSB}, s{sHEAD}, 11", f"s_add_u32 s{sSB}, s{sSB}, {hex(SC0)}"])
    su2.append([f"v_lshlrev_b32 v{vX+1}, 7, v{vT}",
                f"v_lshl_add_u32 v{vX+1}, v{vT+1}, 5, v{vX+1}"])
    su2.append([f"v_lshlrev_b32 v{vX+2}, 7, v{vT+2}", f"v_lshl_add_u32 v{vX+2}, v{vT+1}, 5, v{vX+2}",
                f"v_lshl_add_u32 v{vX+2}, v{vT}, 4, v{vX+2}"])
    su2.append([f"v_lshlrev_b32 v{vX+3}, 4, v0"])
    su2.append([f"s_bfe_u32 s{sNX}, s2, 0x10002", f"s_lshl_b32 s{sNX}, s{sNX}, 1", f"s_and_b32 s{sT3}, s2, 1",
                f"s_or_b32 s{sNX}, s{sNX}, s{sT3}"])
    if LF is not None:
        su2.append([f"s_cmp_eq_u32 s{sFIN}, 0", f"s_cselect_b32 s{sLM}, {LF}, {LQ - LF}", f"s_cselect_b32 s{sPO}, 0, {LF}"])
    su2.append([f"v_lshlrev_b32 v{vKC}, 3, v{vT}", f"v_lshl_add_u32 v{vKC}, v{vT+1}, 12, v{vKC}",
                f"s_lshl_b32 s{sT3}, s{sNX}, 7", f"v_add_u32 v{vKC}, s{sT3}, v{vKC}            ; g*4096 + group*128 + c*8"])
    su2.append([f"v_and_b32 v{vT+3}, 1, v{vT}", f"v_lshl_add_u32 v{vT+3}, v{vT+3}, 2, v{vT+1}    ; 4*(c&1) + g",
                f"v_lshrrev_b32 v{vT+4}, 1, v{vT+3}", f"v_lshlrev_b32 v{vX+4}, 8, v{vT+4}",
                f"v_and_b32 v{vT+3}, 1, v{vT+3}", f"v_lshl_add_u32 v{vX+4}, v{vT+3}, 3, v{vX+4}",
                f"v_lshrrev_b32 v{vT+4}, 1, v{vT}", f"v_lshl_add_u32 v{vX+4}, v{vT+4}, 4, v{vX+4}"])
    su2.append([f"s_lshl_b32 s{sOUT+1}, s{sHEAD}, 14"] + ([] if w0 else [f"s_lshl_b32 s{sT3}, s3, 13", f"s_add_u32 s{sOUT+1}, s{sOUT+1}, s{sT3}"]) + [
                f"s_lshr_b32 s{sT3}, s{sNX}, 1", f"s_lshl_b32 s{sT3}, s{sT3}, 10", f"s_add_u32 s{sOUT+1}, s{sOUT+1}, s{sT3}",
                f"s_and_b32 s{sT3}, s{sNX}, 1", f"s_lshl_b32 s{sT3}, s{sT3}, 7",
                f"s_add_u32 s{sOUT+1}, s{sOUT+1}, s{sT3}     ; wave h reads the slots of slices 4h..4h+3",
                f"s_add_u32 s{sOUT+2}, s{sOUT+1}, 0x1000"])
    if w0:
        su2.append([f"s_add_u32 s{sOUT+4}, s{sOUT+1}, 0x2000", f"s_add_u32 s{sOUT+5}, s{sOUT+1}, 0x3000"])
    if w0:
        su2.append([f"v_lshl_add_u32 v{vX+4}, v{vT+2}, 30, v{vX+4}"])
    su2.append([f"v_lshlrev_b32 v{vX+5}, 3, v{vT}", f"v_lshl_add_u32 v{vX+5}, v{vT+1}, 1, v{vX+5}",
                f"s_lshl_b32 s{sT3}, s{sNX}, 7", f"s_add_u32 s{sOUT}, s{sOUT}, s{sT3}"])

    def shift(vm, dit):
        return [f"{t[0]}{int(t[1:]) + dit*(16 if t[0] == 'L' else 2)}" for t in vm]
    def loop(name, first, last, evs):
        e(f"s_mov_b32 s{sIT}, {first}")
        entry = list(g.vm)
        g.label(f"L_{name}")
        body(first)
        assert g.vm == shift(entry, 1), (g.vm, entry)
        for it, lab in evs:
            assert first <= it <= last
            e(f"s_cmp_eq_u32 s{sIT}, {it}")
            e(f"s_cbranch_scc1 L_{lab}")
        g.label(f"L_{name}_back")
        if bar == 1:
            e("s_barrier")
        elif bar > 1:
            e(f"s_and_b32 s{sT0}, s{sIT}, {bar - 1}")
            e(f"s_cbranch_scc1 L_{name}_nb")
            e("s_barrier")
            g.label(f"L_{name}_nb")
        e(f"s_add_u32 s{sIT}, s{sIT}, 1")
        e(f"s_cmp_le_u32 s{sIT}, {last}")
        e(f"s_cbranch_scc1 L_{name}")
        g.vm = shift(entry, last - first + 1)

    g.c("---- K phase: one iteration consumes two tiles")
    loop("k", 0, 14, [])
    g.c("---- last K iteration (starts loading V); set-up for the second half rides along")
    body(15, [(su[:1], [0]), (su[1:2], [1]), (su[2:], [2]), (su2, [6, 8, 10, 14])])
    assert not any(t[0] == "X" for t in g.vm)
    if not t5 and not t3:
        stamp(2)
    S4 = P
    sc = []
    for i in range(8):
        qr = vQ + (i >> 1)
        grp = [f"v_and_b32 v{vT}, 0xffff0000, v{qr}" if i & 1 else f"v_lshlrev_b32 v{vT}, 16, v{qr}"]
        for r in range(4):
            grp.append(f"{'v_fmac_f32' if i else 'v_mul_f32'} v{S4+r}, v{vT}, v{vACC+i*4+r}")
        sc.append(grp)
    sc.append([f"v_readlane_b32 s{sTAG}, v{vT+5}, 0", f"v_readlane_b32 s{sTB}, v{vT+5}, s{sCI}"])
    sc2 = [[f"s_xor_b32 s{sTAG}, s{sTAG}, 0x5bd1e995"]]
    for sh in (8, 4, 2, 1):
        sc2.append([f"v_add_f32_dpp v{S4+r}, v{S4+r}, v{S4+r} row_ror:{sh} row_mask:0xf bank_mask:0xf" for r in range(4)])
    sc2.append([f"s_mov_b32 vcc_lo, 0x00020002", f"s_mov_b32 vcc_hi, 0x00020002",
                f"v_cndmask_b32 v{Y}, v{S4}, v{S4+2}, vcc", f"v_mov_b32 v{Y+1}, s{sTAG}",
                f"v_cndmask_b32 v{Y+2}, v{S4+1}, v{S4+3}, vcc", f"v_mov_b32 v{Y+3}, s{sTAG}"])
    sc2.append([f"s_mov_b32 exec_lo, 0x00030003", f"s_mov_b32 exec_hi, 0x00030003",
                f"buffer_store_dwordx4 {vr(Y,4)}, v{vX+2}, s[{SW}:{SW+3}], s{sSS} offen sc1",
                f"s_mov_b64 exec, -1"])
    g.c("---- first V iteration; computes and publishes the partial scores of this wave")
    zero_tiles.add(32)
    body(16, [(sc, [0, 2, 4, 6]), (sc2, [8, 10, 14])])

    def fetch(tag=None):
        for k in range(8 if w0 else 4):
            ins = f"buffer_load_dwordx2 {vr(Y+2*k,2)}, v{vX+4}, s[{SW}:{SW+3}], s{sOUT+(1,2,4,5)[k>>1]} offen offset:{(k&1)*2048} sc1"
            if tag:
                g.vmem(ins, tag)
            else:
                e(ins)
    fdr = {}
    def drain(n, m):
        e(f"s_cmp_eq_u32 s{sFIN}, 0")
        e(f"s_cbranch_scc1 L_fdrain{m & 15}")
        fdr[m & 15] = (n, m, list(g.vm))
        for x in range(n, m):
            if x & 1:
                g.wait({f"L{x}"})
                consume(x)
    def check(regs):
        e(f"v_xor_b32 v{vT}, s{sTAG}, v{regs[0]}")
        e(f"v_xor_b32 v{vT+1}, s{sTAG}, v{regs[1]}")
        for i, r in enumerate(regs[2:]):
            e(f"v_bitop3_b32 v{vT+(i&1)}, v{vT+(i&1)}, v{r}, s{sTAG} bitop3:0xf6   ; a | (b ^ c)")
        e(f"v_or_b32 v{vT}, v{vT}, v{vT+1}")
        e(f"v_cmp_ne_u32 vcc, 0, v{vT}")

    hs = 1 if hoist else 0
    lastplain = 17
    while ((lastplain + 1) * 16 + 15 + F + hs) >> 3 < DYN0 - 2:
        lastplain += 1
    assert dQ >= 1
    g.c("---- V phase")
    loop("v", 17, lastplain, [(lastplain - dQ, "evQ")])
    if t3:
        stamp(2)
    g.c("the scores of all 16 waves of this head were requested more than one window ago")
    g.label("L_chkQ")
    check([Y + 5, Y + 7, Y + 9, Y + 11])
    e(f"s_cbranch_vccnz L_retryQ")
    g.label("L_okQ")
    sm = []
    sm.append([f"v_add_f32_dpp v{P+r}, v{Y+4+2*r}, v{Y+4+2*r} row_ror:8 row_mask:0xf bank_mask:0xf" for r in range(4)])
    for sh in (4, 2, 1):
        sm.append([f"v_add_f32_dpp v{P+r}, v{P+r}, v{P+r} row_ror:{sh} row_mask:0xf bank_mask:0xf" for r in range(4)])
    sm.append([f"v_max3_f32 v{vT}, v{P}, v{P+1}, v{P+2}", f"v_max_f32 v{vT}, v{vT}, v{P+3}",
               f"v_mov_b32 v{vT+1}, v{vT}", "s_nop 1", f"v_permlane32_swap_b32 v{vT}, v{vT+1}",
               f"v_max_f32 v{vT}, v{vT}, v{vT+1}"])
    sm.append([f"v_mov_b32 v{vT+1}, v{vT}", "s_nop 1", f"v_permlane16_swap_b32 v{vT}, v{vT+1}",
               f"v_max_f32 v{vT}, v{vT}, v{vT+1}"])
    sm.append([f"v_sub_f32 v{P+r}, v{P+r}, v{vT}" for r in range(4)])
    sm.append([f"v_mul_f32 v{P+r}, s{sLE}, v{P+r}" for r in range(4)])
    sm.append([f"v_exp_f32 v{P+r}, v{P+r}" for r in range(4)] + ["s_nop 0"])
    sm.append([f"v_add_f32 v{vT}, v{P}, v{P+1}", f"v_add_f32 v{vT+1}, v{P+2}, v{P+3}", f"v_add_f32 v{vT}, v{vT}, v{vT+1}",
               f"v_mov_b32 v{vT+1}, v{vT}", "s_nop 1", f"v_permlane32_swap_b32 v{vT}, v{vT+1}",
               f"v_add_f32 v{vT}, v{vT}, v{vT+1}"])
    sm.append([f"v_mov_b32 v{vT+1}, v{vT}", "s_nop 1", f"v_permlane16_swap_b32 v{vT}, v{vT+1}",
               f"v_add_f32 v{vT}, v{vT}, v{vT+1}", f"v_rcp_f32 v{vT}, v{vT}", "s_nop 0"])
    sm.append([f"v_mul_f32 v{P+r}, v{P+r}, v{vT}" for r in range(4)])
    it = lastplain + 1
    g.c("softmax over the 16 scores (4 registers x 4 lane groups), spread over this iteration; first tickets")
    body(it, [(sm, [0, 2, 4, 6, 8, 10, 12, 14])])
    assert not drains
    it += 1
    g.c("---- tiles by ticket")
    while True:
        entry = list(g.vm)
        pos, nd = len(g.lines), len(drains)
        body(it)
        it += 1
        if g.vm == shift(entry, 1) and len(drains) == nd + 2:
            g.lines.insert(pos, "L_dyn:")
            break
    e(f"s_branch L_dyn")
    seen = {}
    for lab, n, m, vm in drains:
        g.vm = list(vm)
        start = len(g.lines)
        drain(n, m)
        code = g.lines[start:]
        del g.lines[start:]
        seen.setdefault("\n".join(code), []).append(lab)
    t = vB
    def row_epilogue():
        e(f"v_mov_b32 v{Y+17}, s{sTAG}")
        for i in range(8):
            a = vACC + i * 4
            e(f"v_mul_f32 v{t+i}, v{P}, v{a}")
            e(f"v_fmac_f32 v{t+i}, v{P+1}, v{a+1}")
            e(f"v_fmac_f32 v{t+i}, v{P+2}, v{a+2}")
            e(f"v_fmac_f32 v{t+i}, v{P+3}, v{a+3}")
        e(f"v_mov_b32 v{Y+19}, s{sTAG}")
        e(f"s_mov_b32 s{sCNT}, 0")
        for m in range(4):
            e(f"v_permlane32_swap_b32 v{t+m}, v{t+m+4}")
        for m in range(4):
            e(f"v_add_f32 v{t+m}, v{t+m}, v{t+m+4}")
        e("s_nop 1")
        for m in range(2):
            e(f"v_permlane16_swap_b32 v{t+m}, v{t+m+2}")
        for m in range(2):
            e(f"v_add_f32 v{Y+16+2*m}, v{t+m}, v{t+m+2}")
        stamp(1)
    def tile_addr(idx):
        return ((idx & 3) << 14) | (((idx >> 2) & 3) << 20) | (((idx >> 4) + PC0) << 16)
    g.c("---- no tile left, finishing workgroup: it goes on with its 64 columns of the kept-back rows")
    assert LQ % 2 == 0
    for par, (n0, m, vm) in fdr.items():
        g.vm = list(vm)
        g.label(f"L_fdrain{par}")
        e(f"s_lshl_b32 s{sCO}, s3, {15 if sep else 14}")
        e(f"s_xor_b32 s{sCO}, s{sCO}, s{sVB}")
        r0 = vR + ((m - 16) % NR) * 4
        r1_ = vR + ((m - 8) % NR) * 4
        bases = [vC, vC + 16, r0, r0 + 16, r1_, r1_ + 16]
        afr = [vCA, vCA + 4, vCA + 8, vCA + 12, vA, vA + 4]
        st = dict(y=0, lim=16)
        def col_issue(cnt):
            while cnt > 0 and st["y"] < min(8 * RC, st["lim"]):
                y = st["y"]
                j, k = y >> 3, y & 7
                if k == 0:
                    e(f"s_xor_b32 s{sOFF}, s{sCO}, {hex(((PC0 - 1) << 16 | 1 << 14 | j << 20) if sep else tile_addr(LQ + 2*j))}")
                    e(f"s_bfe_u32 s{sEOFF}, s{sOFF}, 0xe0008")
                    g.vmem(f"buffer_load_dwordx4 {vr(afr[j],4)}, v{vEF}, s[{SF}:{SF+3}], s{sEOFF} offen", f"B{j}")
                g.vmem(f"buffer_load_dwordx2 {vr(bases[j]+2*k,2)}, v{vKC}, s[{SV}:{SV+3}], s{sOFF} offen offset:{k*512}{polf}", f"C{y}")
                st["y"] += 1
                cnt -= 1
        acc_r = 0
        for x in range(n0, m):
            g.wait({f"L{x}"})
            acc_r += r1
            col_issue(int(acc_r) - st["y"])
            consume(x)
            if x == m - 9:
                st["lim"] = 32
        st["lim"] = 48
        col_issue(W2 - st["y"])
        row_epilogue()
        g.vmem(f"buffer_store_dwordx4 {vr(Y+16,4)}, v{vX+3}, s[{SW}:{SW+3}], s{sWSL} offen sc1", "S")
        bb = vB + 16
        fetched = False
        for y in range(1, 8 * RC, 2):
            j, q = y >> 3, (y >> 1) & 3
            if not fetched and y >= 8 * RC - fpos and st["y"] == 8 * RC:
                fetch("Y")
                fetched = True
            g.wait({f"C{y}"})
            col_issue(y + 1 + W2 - st["y"])
            for i in range(4):
                sel = sHI if (i & 1) else sLO
                e(f"v_perm_b32 v{bb+i*4+q}, v{bases[j]+4*q+2+(i>>1)}, v{bases[j]+4*q+(i>>1)}, s{sel}")
            if q == 3:
                for i in range(4):
                    e(f"v_mfma_f32_16x16x32_bf16 {vr(vCC+4*i,4)}, {vr(afr[j],4)}, {vr(bb+i*4,4)}, {'0' if j == 0 else vr(vCC+4*i,4)}")
        assert fetched
        e("s_branch L_col")
    g.c("---- no tile left: consume what is in flight, publish the partial")
    keys = list(seen)
    for i, key in enumerate(keys):
        for lab in seen[key]:
            g.label(lab)
        g.lines.append(key)
        if i + 1 < len(keys):
            e("s_branch L_epi")
    g.label("L_epi")
    row_epilogue()
    e(f"buffer_store_dwordx4 {vr(Y+16,4)}, v{vX+3}, s[{SW}:{SW+3}], s{sWSL} offen sc1")
    e(f"s_branch L_exit" if stamps else "s_endpgm")
    g.label("L_col")
    stamp(2)
    e(f"v_and_b32 v{t+9}, 63, v0")
    e(f"v_lshlrev_b32 v{t+9}, 2, v{t+9}")
    e("s_nop 2")
    for i in range(4):
        a = vCC + i * 4
        e(f"v_mul_f32 v{t+i}, v{P}, v{a}")
        e(f"v_fmac_f32 v{t+i}, v{P+1}, v{a+1}")
        e(f"v_fmac_f32 v{t+i}, v{P+2}, v{a+2}")
        e(f"v_fmac_f32 v{t+i}, v{P+3}, v{a+3}")
    e("s_nop 1")
    for m in range(2):
        e(f"v_permlane32_swap_b32 v{t+m}, v{t+m+2}")
    for m in range(2):
        e(f"v_add_f32 v{t+m}, v{t+m}, v{t+m+2}")
    e("s_nop 1")
    e(f"v_permlane16_swap_b32 v{t}, v{t+1}")
    e(f"v_add_f32 v{t}, v{t}, v{t+1}")
    if w0:
        e(f"s_cmp_eq_u32 s3, 0")
        e(f"s_cbranch_scc1 L_w0")
        e(f"ds_write_b32 v{t+9}, v{t}")
        e(f"s_waitcnt lgkmcnt(0)")
        e(f"s_barrier")
        e(f"s_branch L_exit" if stamps else "s_endpgm")
        g.label("L_w0")
        e(f"s_barrier")
        e(f"ds_read_b32 v{t+1}, v{t+9}")
        e(f"s_branch L_look")
        g.label("L_again")
        fetch()
        g.label("L_look")
        e(f"s_add_u32 s{sCNT}, s{sCNT}, 1")
        e(f"s_cmp_ge_u32 s{sCNT}, {hex(SPIN)}")
        e(f"s_waitcnt vmcnt(0)")
        check([Y + 1 + 2 * k for k in range(8)])
        e(f"s_cbranch_scc1 L_fin")
        e(f"s_cbranch_vccnz L_again")
        g.label("L_fin")
        for k in range(0, 8, 2):
            e(f"v_add_f32 v{Y+2*k}, v{Y+2*k}, v{Y+2*k+2}")
        e(f"s_waitcnt lgkmcnt(0)")
        e(f"v_add_f32 v{t}, v{t}, v{t+1}")
        e(f"v_add_f32 v{Y}, v{Y}, v{Y+4}")
        e(f"v_add_f32 v{Y+8}, v{Y+8}, v{Y+12}")
        e(f"v_add_f32 v{t}, v{t}, v{Y}")
        e(f"v_add_f32 v{t}, v{t}, v{Y+8}")
        e(f"v_cvt_pk_bf16_f32 v{t}, v{t}, v{t}")
        e(f"buffer_store_short v{t}, v{vX+5}, s[{SO}:{SO+3}], s{sOUT} offen")
    else:
        e(f"s_branch L_look")
        g.label("L_again")
        fetch()
        g.label("L_look")
        e(f"s_add_u32 s{sCNT}, s{sCNT}, 1")
        e(f"s_cmp_ge_u32 s{sCNT}, {hex(SPIN)}")
        e(f"s_waitcnt vmcnt(0)")
        check([Y + 1, Y + 3, Y + 5, Y + 7])
        e(f"s_cbranch_scc1 L_fin")
        e(f"s_cbranch_vccnz L_again")
        g.label("L_fin")
        e(f"v_add_f32 v{Y}, v{Y}, v{Y+2}")
        e(f"v_add_f32 v{Y+4}, v{Y+4}, v{Y+6}")
        e(f"v_add_f32 v{t}, v{t}, v{Y}")
        e(f"s_cmp_eq_u32 s3, 0")
        e(f"v_add_f32 v{t}, v{t}, v{Y+4}")
        e(f"s_cbranch_scc1 L_w0")
        e(f"ds_write_b32 v{t+9}, v{t}")
        e(f"s_waitcnt lgkmcnt(0)")
        e(f"s_barrier")
        e(f"s_branch L_exit" if stamps else "s_endpgm")
        g.label("L_w0")
        e(f"s_barrier")
        e(f"ds_read_b32 v{t+1}, v{t+9}")
        e(f"s_waitcnt lgkmcnt(0)")
        e(f"v_add_f32 v{t}, v{t}, v{t+1}")
        e(f"v_cvt_pk_bf16_f32 v{t}, v{t}, v{t}")
        e(f"buffer_store_short v{t}, v{vX+5}, s[{SO}:{SO+3}], s{sOUT} offen")
    g.label("L_exit")
    if stamps:
        e("s_waitcnt vmcnt(0)")
        e("s_memrealtime s[70:71]")
        e("s_waitcnt lgkmcnt(0)")
        e("s_mov_b64 exec, 1")
        for i in range(4):
            e(f"v_mov_b32 v{8+i}, s{64+2*i}")
        e(f"s_lshl_b32 s56, s2, 5")
        e(f"s_lshl_b32 s57, s3, 4")
        e(f"s_add_u32 s56, s56, s57")
        e(f"s_add_u32 s56, s56, {1<<20}")
        e(f"buffer_store_dwordx4 v[8:11], off, s[{SW}:{SW+3}], s56")
    g.label("L_end")
    e("s_endpgm")

    def emitQ():
        e(f"buffer_load_dwordx4 {vr(Y+4,4)}, v{vX+1}, s[{SW}:{SW+3}], s{sSB} offen sc1")
        e(f"buffer_load_dwordx4 {vr(Y+8,4)}, v{vX+1}, s[{SW}:{SW+3}], s{sSB} offen offset:16 sc1")
    g.c("---- out of line: fetch the partial scores of the head (not counted: waits only get stricter)")
    g.label("L_evQ")
    emitQ()
    e(f"s_mov_b32 s{sCNT}, 0")
    e(f"s_branch L_v_back")
    g.label("L_retryQ")
    emitQ()
    e(f"s_add_u32 s{sCNT}, s{sCNT}, 1")
    e(f"s_cmp_lt_u32 s{sCNT}, {hex(SPIN)}")
    e(f"s_waitcnt vmcnt(0)")
    e(f"s_cbranch_scc1 L_chkQ")
    g.label("L_last")
    e(f"s_branch L_okQ")

    out = HEADER
    out += f"; @launch grid=(256,1,1) block=(128,1,1) lds=256\n"
    out += DOC
    out += f""".amdgcn_target "amdgcn-amd-amdhsa--gfx950"
.text
.globl {NAME}
.p2align 8
.type {NAME},@function
{NAME}:
"""
    out += g.text()
    out += f""".section .rodata,"a"
.p2align 6
.amdhsa_kernel {NAME}
  .amdhsa_next_free_vgpr {NV}
  .amdhsa_next_free_sgpr 96
  .amdhsa_accum_offset {NV}
  .amdhsa_group_segment_fixed_size 0
  .amdhsa_kernarg_size 64
  .amdhsa_user_sgpr_count 2
  .amdhsa_user_sgpr_kernarg_segment_ptr 1
  .amdhsa_system_sgpr_workgroup_id_x 1
  .amdhsa_float_denorm_mode_32 3
.end_amdhsa_kernel
"""
    return out

if __name__ == "__main__":
    import ast
    kw = {}
    for a in sys.argv[2:]:
        k, v = a.split("=")
        try: kw[k] = ast.literal_eval(v)
        except Exception: kw[k] = v
    open(sys.argv[1], "w").write(gen(**kw))
```

```python
from batch3 import run
import gen14, gen15
C = []
def add(**kw):
    C.append((str(kw), kw))
def gen(which=15, **kw):
    return (gen14 if which == 14 else gen15).gen(**kw)
add(bfirst=False)
add()
add(nO=0x0707)
add(nO=0x1f1f)
add(nO=0x1f1f, nE=0x0101)
add(nO=0x3f3f, nE=0x0303)
add(nO=0x00ff)
add(nO=0)
run(C, gen, ev=True)
```

```python
import sys
from gen import G, vr, HEADER, NAME

DOC = """;
;
; A tile is 32 rows: 8 x buffer_load_dwordx4 (lane group g = rows 8g..8g+7, lane c = 16-byte column chunk), transposed
; Hand-offs go through d_ws as {value, tag} pairs (write-through stores, L1-bypassing loads).  The tag and the first
"""

def gen(F=11, pol="nt", stamps=False, dQ=2, aslot=6, ND=4, SPIN=0x200000, pre=6, R=2, hoist=True, track=True, cpf=1, tight=0, t5=False, nE=0, nO=0x0f0f, t3=False, dynn=False, nb=0, wide0=2, bar=0, RC=4, fpos=4, r1=2, W2=32, LF=None, npl=1, sep=False, w0=False, bfirst=False, cnt=False):
    g = G()
    e = g.e
    SK, SV, SE, SF, SQ, SO, SW = 4, 8, 12, 16, 20, 24, 32
    sTAG, sTB, sLE = 28, 29, 31
    sLO, sHI, sOFF, sEOFF = 36, 37, 38, 39
    sT0, sT1, sT2, sT3 = 56, 57, 58, 59
    sWSL, sHEAD, sCNT, sIT = 60, 61, 62, 63
    sKV0, sTC, sROT = 72, 73, 74
    sSB, sSS, sCT, sVB = 75, 76, 77, 78
    sOUT = 80
    sNX, sLM, sFIN = 88, 89, 90
    vKV, vEF = 1, 2
    vT = 4
    vX = 10
    vQ = 16
    vTK = 16
    P = 20
    vA = 24
    vACC = 32
    vB = 64
    vR = 96
    NR = 16
    Y = vR + NR * 4
    vC = Y + 28
    vCA = vC + 32
    vCC = vCA + 16
    NV = vCC + 16
    vKC = 3
    sPO, sCI = 93, 83
    sCO = 92
    R = 2 * RC
    assert 2 <= RC <= 6
    assert 9 <= F <= 14 and aslot >= F - 8 and ND % 2 == 0 and ND >= 2 and (nE & ~nO) == 0
    sXC = 91
    ncond = [0]
    NSV = 32 - ND
    LQ = 8 * ND - R
    PC0 = NSV // 2
    if sep:
        assert RC == 4
        LQ = 8 * ND
        NSV -= 1
    SC0, CT0 = 0x80000, 0x90000
    polf = " " + pol if pol else ""

    def stamp(idx):
        if stamps:
            e(f"s_memrealtime s[{64+2*idx}:{65+2*idx}]")

    def emit_cpf():
        g.c("pull the kernel's own code into L2 (four 128-byte lines per wave); the value is not used")
        e(f"s_getpc_b64 s[94:95]")
        g.label("L_pc")
        e(f"s_lshr_b32 s{sT1}, s2, 3")
        e(f"s_mul_i32 s{sT1}, s{sT1}, 3")
        e(f"v_add_lshl_u32 v{Y+24}, v0, s{sT1}, 7")
        e(f"v_min_u32 v{Y+24}, L_last - L_pc, v{Y+24}")
        e(f"v_mov_b32 v{Y+25}, 0")
        e(f"v_lshl_add_u64 {vr(Y+24,2)}, {vr(Y+24,2)}, 0, s[94:95]")
        e(f"s_mov_b64 exec, 15")
        e(f"global_load_dword v{Y+26}, {vr(Y+24,2)}, off")
        e(f"s_mov_b64 exec, -1")
    def emit_e():
        e(f"v_and_b32 v{vT}, 15, v0                ; c")
        e(f"v_bfe_u32 v{vT+1}, v0, 4, 2            ; g")
        e(f"v_lshlrev_b32 v{vEF}, 4, v{vT+1}")
        e(f"v_lshl_add_u32 v{vEF}, v{vT}, 14, v{vEF}     ; c*16384 + g*16")
        e(f"s_mov_b64 s[{SE}:{SE+1}], s[46:47]")
        e(f"s_mov_b32 s{SE+2}, 0x40000")
        e(f"s_mov_b32 s{SE+3}, 0x20000")
        e(f"s_mov_b32 s{sTC}, 0")
        e(f"s_mov_b32 s{sKV0}, s{sOFF}")
        e(f"s_bfe_u32 s{sEOFF}, s{sOFF}, 0xe0008")
    if tight:
        e(f"s_load_dwordx16 s[40:55], s[0:1], 0")
        e(f"s_lshr_b32 s{sT0}, s2, 8")
        e(f"s_cbranch_scc1 L_end")
        stamp(0)
        if tight == 1:
            emit_cpf()
        g.c("lane offset: c*16 + h*256 + g*4096")
        e(f"v_lshlrev_b32 v{vX}, 4, v0             ; c*16 + g*256 + h*1024")
        e(f"v_lshrrev_b32 v{vT+2}, 6, v0           ; h")
        e(f"v_and_b32 v{vKV}, 0x300, v{vX}")
        e(f"v_and_b32 v{vX}, 0xf0, v{vX}")
        e(f"v_lshl_add_u32 v{vX}, v{vT+2}, 8, v{vX}      ; h*256 + c*16")
        e(f"v_lshl_add_u32 v{vKV}, v{vKV}, 4, v{vX}")
        e(f"s_brev_b32 s{SK+2}, 16                  ; 0x8000000")
        e(f"s_mov_b32 s{SK+3}, 0x20000")
        g.c("byte offset of a tile: bit 15 = slice bit 0, bits 20..21 = slice bits 1..2, bits 22.. = head,")
        g.c("bits 14, 16..19 = tile number (bits 16..19 XORed with the head: heads walk their tiles in different orders)")
        e(f"s_lshr_b32 s{sOFF}, s2, 1")
        e(f"s_lshl_b32 s{sOFF}, s{sOFF}, 20")
        e(f"s_and_b32 s{sT0}, s2, 1")
        e(f"s_lshl_b32 s{sT0}, s{sT0}, 15")
        e(f"s_or_b32 s{sOFF}, s{sOFF}, s{sT0}")
        e(f"s_and_b32 s{sROT}, s2, 0x78")
        e(f"s_lshl_b32 s{sROT}, s{sROT}, 13")
        e(f"s_or_b32 s{sOFF}, s{sOFF}, s{sROT}")
        e(f"s_waitcnt lgkmcnt(0)")
        e(f"s_mov_b64 s[{SK}:{SK+1}], s[42:43]")
    else:
        e(f"s_load_dwordx16 s[40:55], s[0:1], 0")
        e(f"s_cmp_ge_u32 s2, 256")
        e(f"s_cbranch_scc1 L_end")
        stamp(0)
        if cpf:
            g.c("pull the kernel's own code into L2 (four 128-byte lines per wave); the value is not used")
            e(f"s_getpc_b64 s[94:95]")
            g.label("L_pc")
            e(f"s_lshr_b32 s{sT0}, s2, 3")
            e(f"s_mul_i32 s{sT0}, s{sT0}, 4")
            e(f"v_add_lshl_u32 v{Y+24}, v0, s{sT0}, 7")
            e(f"v_min_u32 v{Y+24}, L_last - L_pc, v{Y+24}")
            e(f"v_mov_b32 v{Y+25}, 0")
            e(f"v_lshl_add_u64 {vr(Y+24,2)}, {vr(Y+24,2)}, 0, s[94:95]")
            e(f"s_mov_b64 exec, 15")
            e(f"global_load_dword v{Y+26}, {vr(Y+24,2)}, off")
            e(f"s_mov_b64 exec, -1")
        e(f"v_and_b32 v{vT}, 15, v0                ; c")
        e(f"v_bfe_u32 v{vT+1}, v0, 4, 2            ; g")
        e(f"v_lshrrev_b32 v{vT+2}, 6, v0           ; h")
        e(f"v_lshlrev_b32 v{vX}, 4, v{vT}")
        e(f"v_lshl_add_u32 v{vX}, v{vT+2}, 8, v{vX}      ; h*256 + c*16")
        e(f"v_lshl_add_u32 v{vKV}, v{vT+1}, 12, v{vX}    ; + g*4096")
        e(f"v_lshlrev_b32 v{vEF}, 4, v{vT+1}")
        e(f"v_lshl_add_u32 v{vEF}, v{vT}, 14, v{vEF}     ; c*16384 + g*16")
        e(f"s_mov_b32 s{SK+2}, 0x8000000")
        e(f"s_mov_b32 s{SK+3}, 0x20000")
        e(f"s_mov_b32 s{SE+2}, 0x40000")
        e(f"s_mov_b32 s{SE+3}, 0x20000")
        g.c("byte offset of a tile: bit 15 = slice bit 0, bits 20..21 = slice bits 1..2, bits 22.. = head,")
        g.c("bits 14, 16..19 = tile number (bits 16..19 XORed with the head: heads walk their tiles in different orders)")
        e(f"s_lshr_b32 s{sKV0}, s2, 1")
        e(f"s_lshl_b32 s{sKV0}, s{sKV0}, 20")
        e(f"s_and_b32 s{sT0}, s2, 1")
        e(f"s_lshl_b32 s{sT0}, s{sT0}, 15")
        e(f"s_or_b32 s{sKV0}, s{sKV0}, s{sT0}")
        e(f"s_bfe_u32 s{sROT}, s2, 0x40003")
        e(f"s_lshl_b32 s{sROT}, s{sROT}, 16")
        e(f"s_or_b32 s{sKV0}, s{sKV0}, s{sROT}")
        e(f"s_mov_b32 s{sTC}, 0")
        e(f"s_mov_b32 s{sOFF}, s{sKV0}")
        e(f"s_bfe_u32 s{sEOFF}, s{sOFF}, 0xe0008")
        e(f"s_waitcnt lgkmcnt(0)")
        e(f"s_mov_b64 s[{SK}:{SK+1}], s[42:43]")
        e(f"s_mov_b64 s[{SE}:{SE+1}], s[46:47]")

    DYN0 = 32 + NSV
    drains = []
    def request(T):
        e(f"v_mov_b32 v{vTK+(T&1)}, 1")
        e(f"s_mov_b64 exec, 1")
        g.vmem(f"buffer_atomic_add v{vTK+(T&1)}, off, s[{SW}:{SW+3}], s{sCT} sc0", f"R{T}")
        e(f"s_mov_b64 exec, -1")

    def boundary(T, n):
        if T < DYN0:
            if T == 32:
                e(f"s_mov_b32 s{sTC}, 0")
            else:
                e(f"s_add_u32 s{sTC}, s{sTC}, {'0x4000' if T & 1 else '0xc000'}")
            e(f"s_xor_b32 s{sOFF}, s{sTC}, s{sKV0}")
        else:
            g.wait({f"R{T}"})
            e(f"v_readfirstlane_b32 s{sT0}, v{vTK+(T&1)}")
            e(f"s_sub_u32 s{sT0}, s{sT0}, s{sTB}")
            if LF is None:
                e(f"s_cmp_ge_u32 s{sT0}, {LQ}")
            else:
                e(f"s_cmp_ge_u32 s{sT0}, s{sLM}")
            lab = f"L_drain{len(drains)}"
            drains.append((lab, n, T * 8, list(g.vm)))
            e(f"s_cbranch_scc1 {lab}")
            if cnt:
                e(f"s_add_u32 s68, s68, 0x10000000")
            if LF is not None:
                e(f"s_add_u32 s{sT0}, s{sT0}, s{sPO}")
            e(f"s_and_b32 s{sT1}, s{sT0}, 3")
            e(f"s_lshl_b32 s{sOFF}, s{sT1}, 14")
            e(f"s_bfe_u32 s{sT1}, s{sT0}, 0x20002")
            e(f"s_lshl_b32 s{sT1}, s{sT1}, 20")
            e(f"s_or_b32 s{sOFF}, s{sOFF}, s{sT1}")
            e(f"s_lshr_b32 s{sT0}, s{sT0}, 4")
            e(f"s_add_u32 s{sT0}, s{sT0}, {PC0}")
            e(f"s_lshl_b32 s{sT0}, s{sT0}, 16")
            e(f"s_or_b32 s{sOFF}, s{sOFF}, s{sT0}")
            e(f"s_xor_b32 s{sOFF}, s{sOFF}, s{sVB}")
        e(f"s_bfe_u32 s{sEOFF}, s{sOFF}, 0xe0008")
        if T + 2 >= DYN0:
            request(T + 2)

    def issue(m, n=None):
        T, k = m >> 3, m & 7
        ph = int(T >= 32)
        if k == 0 and m > 0 and not hoist:
            boundary(T, n)
        if k == aslot:
            srd = SF if ph else SE
            g.vmem(f"buffer_load_dwordx4 {vr(vA+(T&1)*4,4)}, v{vEF}, s[{srd}:{srd+3}], s{sEOFF} offen", f"A{T}")
        srd = SV if ph else SK
        r = vR + (m % NR) * 4
        g.vmem(f"buffer_load_dwordx4 {vr(r,4)}, v{vKV}, s[{srd}:{srd+3}], s{sOFF} offen offset:{k*512}{polf}", f"L{m}")
        if k == 7 and hoist:
            boundary(T + 1, n)

    zero_tiles = set()
    def consume(n):
        if not (n & 1):
            return
        T, q = n >> 3, (n >> 1) & 3
        x0 = vR + ((n - 1) % NR) * 4
        x1 = vR + (n % NR) * 4
        def perm(i):
            sel = sHI if (i & 1) else sLO
            e(f"v_perm_b32 v{vB+i*4+q}, v{x1+(i>>1)}, v{x0+(i>>1)}, s{sel}")
        def mfma(i):
            acc = vACC + i * 4
            cin = "0" if T in zero_tiles else vr(acc, 4)
            e(f"v_mfma_f32_16x16x32_bf16 {vr(acc,4)}, {vr(vA+(T&1)*4,4)}, {vr(vB+i*4,4)}, {cin}")
        if q != 3:
            for i in range(8):
                perm(i)
            return
        perm(0); perm(1); perm(2)
        for i in range(8):
            mfma(i)
            if i + 3 < 8:
                perm(i + 3)

    def body(it, fills=()):
        st = [[list(gr), sl, sum(map(len, gr)), 0] for gr, sl in fills]
        for n in range(it * 16, it * 16 + 16):
            k = n & 15
            use = dynn or ((n + F) >> 3) < DYN0 - wide0
            save = list(g.vm)
            x = nb if use else 0
            if use and (nO >> k & 1):
                if not (nE >> k & 1):
                    ncond[0] += 1
                    e(f"s_bitcmp0_b32 s{sXC}, 0")
                    if not bfirst:
                        g.wait({f"L{n+x}"})
                    e(f"s_cbranch_scc1 L_w{ncond[0]}")
                g.wait({f"L{n+x+1}"})
                if not (nE >> k & 1):
                    g.label(f"L_w{ncond[0]}")
                    if bfirst:
                        g.vm = list(save)
                        g.wait({f"L{n+x}"})
            else:
                g.wait({f"L{n+x}"})
            g.vm = save[save.index(f"L{n}") + 1:]
            issue(n + F, n)
            consume(n)
            for f in st:
                if (n & 15) in f[1]:
                    want = f[2] * (f[1].index(n & 15) + 1) / len(f[1])
                    while f[0] and f[3] < want:
                        grp = f[0].pop(0)
                        f[3] += len(grp)
                        for ins in grp:
                            if ins.startswith("buffer_load") and track:
                                g.vmem(ins, "X0")
                            else:
                                e(ins)
        assert not any(f[0] for f in st)

    for n in range(F):
        if tight and n == aslot:
            emit_e()
        issue(n)
    if t5:
        stamp(2)
    if tight == 2:
        emit_cpf()
    if nO != nE:
        e(f"s_getreg_b32 s{sXC}, hwreg(HW_REG_XCC_ID)")
    e(f"s_mov_b32 s{sLO}, 0x05040100")
    e(f"s_mov_b32 s{sHI}, 0x07060302")
    for r in range(0, 32, 2):
        e(f"v_mov_b64 {vr(vACC+r,2)}, 0")

    su = []
    su.append([f"v_readfirstlane_b32 s3, v{vT+2}",
               f"s_mov_b64 s[{SV}:{SV+1}], s[44:45]", f"s_mov_b32 s{SV+2}, 0x8000000", f"s_mov_b32 s{SV+3}, 0x20000",
               f"s_mov_b64 s[{SQ}:{SQ+1}], s[40:41]", f"s_mov_b32 s{SQ+2}, 0x4000", f"s_mov_b32 s{SQ+3}, 0x20000",
               f"s_lshr_b32 s{sHEAD}, s2, 3", f"s_lshl_b32 s{sOUT}, s{sHEAD}, 9",
               f"buffer_load_dwordx4 {vr(vQ,4)}, v{vX}, s[{SQ}:{SQ+3}], s{sOUT} offen"])
    su.append([f"s_mov_b64 s[{SW}:{SW+1}], s[54:55]", f"s_mov_b32 s{SW+2}, 0x20000000", f"s_mov_b32 s{SW+3}, 0x20000",
               f"s_lshl_b32 s{sT2}, s{sHEAD}, 10", f"s_add_u32 s{sT2}, s{sT2}, {hex(CT0)}",
               f"v_and_b32 v{vT+3}, 3, v0", f"v_lshlrev_b32 v{vT+3}, 8, v{vT+3}", f"s_mov_b64 exec, {5 if LF is None else 15}",
               f"buffer_load_dword v{vT+5}, v{vT+3}, s[{SW}:{SW+3}], s{sT2} offen sc1",
               f"s_mov_b64 exec, -1"])
    su.append([f"s_mov_b64 s[{SF}:{SF+1}], s[48:49]", f"s_mov_b32 s{SF+2}, 0x40000", f"s_mov_b32 s{SF+3}, 0x20000",
               f"s_lshr_b32 s{sT3}, s2, 1", f"s_xor_b32 s{sT3}, s{sT3}, s{sHEAD}",
               f"s_and_b32 s{sFIN}, s{sT3}, 1              ; 0: this workgroup finishes 64 columns",
               f"s_lshl_b32 s{sCI}, s3, 1"] + ([] if LF is None else [f"s_or_b32 s{sCI}, s{sCI}, s{sFIN}"]) +
              [f"s_lshl_b32 s{sT3}, s{sCI}, 8", f"s_add_u32 s{sCT}, s{sT2}, s{sT3}         ; counter of this wave's pool"])
    su2 = []
    su2.append([f"s_mov_b64 s[{SO}:{SO+1}], s[50:51]", f"s_mov_b32 s{SO+2}, 0x4000", f"s_mov_b32 s{SO+3}, 0x20000",
                f"s_mov_b32 s{sLE}, 0x3db8aa3b          ; log2(e)/16"])
    su2.append([f"s_lshl_b32 s{sVB}, s{sHEAD}, 22", f"s_or_b32 s{sVB}, s{sVB}, s{sROT}"])
    su2.append([f"s_lshl_b32 s{sWSL}, s2, 11",
                f"s_lshl_b32 s{sSS}, s2, 8", f"s_add_u32 s{sSS}, s{sSS}, {hex(SC0)}",
                f"s_lshl_b32 s{sSB}, s{sHEAD}, 11", f"s_add_u32 s{sSB}, s{sSB}, {hex(SC0)}"])
    su2.append([f"v_lshlrev_b32 v{vX+1}, 7, v{vT}",
                f"v_lshl_add_u32 v{vX+1}, v{vT+1}, 5, v{vX+1}"])
    su2.append([f"v_lshlrev_b32 v{vX+2}, 7, v{vT+2}", f"v_lshl_add_u32 v{vX+2}, v{vT+1}, 5, v{vX+2}",
                f"v_lshl_add_u32 v{vX+2}, v{vT}, 4, v{vX+2}"])
    su2.append([f"v_lshlrev_b32 v{vX+3}, 4, v0"])
    su2.append([f"s_bfe_u32 s{sNX}, s2, 0x10002", f"s_lshl_b32 s{sNX}, s{sNX}, 1", f"s_and_b32 s{sT3}, s2, 1",
                f"s_or_b32 s{sNX}, s{sNX}, s{sT3}"])
    if LF is not None:
        su2.append([f"s_cmp_eq_u32 s{sFIN}, 0", f"s_cselect_b32 s{sLM}, {LF}, {LQ - LF}", f"s_cselect_b32 s{sPO}, 0, {LF}"])
    su2.append([f"v_lshlrev_b32 v{vKC}, 3, v{vT}", f"v_lshl_add_u32 v{vKC}, v{vT+1}, 12, v{vKC}",
                f"s_lshl_b32 s{sT3}, s{sNX}, 7", f"v_add_u32 v{vKC}, s{sT3}, v{vKC}            ; g*4096 + group*128 + c*8"])
    su2.append([f"v_and_b32 v{vT+3}, 1, v{vT}", f"v_lshl_add_u32 v{vT+3}, v{vT+3}, 2, v{vT+1}    ; 4*(c&1) + g",
                f"v_lshrrev_b32 v{vT+4}, 1, v{vT+3}", f"v_lshlrev_b32 v{vX+4}, 8, v{vT+4}",
                f"v_and_b32 v{vT+3}, 1, v{vT+3}", f"v_lshl_add_u32 v{vX+4}, v{vT+3}, 3, v{vX+4}",
                f"v_lshrrev_b32 v{vT+4}, 1, v{vT}", f"v_lshl_add_u32 v{vX+4}, v{vT+4}, 4, v{vX+4}"])
    su2.append([f"s_lshl_b32 s{sOUT+1}, s{sHEAD}, 14"] + ([] if w0 else [f"s_lshl_b32 s{sT3}, s3, 13", f"s_add_u32 s{sOUT+1}, s{sOUT+1}, s{sT3}"]) + [
                f"s_lshr_b32 s{sT3}, s{sNX}, 1", f"s_lshl_b32 s{sT3}, s{sT3}, 10", f"s_add_u32 s{sOUT+1}, s{sOUT+1}, s{sT3}",
                f"s_and_b32 s{sT3}, s{sNX}, 1", f"s_lshl_b32 s{sT3}, s{sT3}, 7",
                f"s_add_u32 s{sOUT+1}, s{sOUT+1}, s{sT3}     ; wave h reads the slots of slices 4h..4h+3",
                f"s_add_u32 s{sOUT+2}, s{sOUT+1}, 0x1000"])
    if w0:
        su2.append([f"s_add_u32 s{sOUT+4}, s{sOUT+1}, 0x2000", f"s_add_u32 s{sOUT+5}, s{sOUT+1}, 0x3000"])
    if w0:
        su2.append([f"v_lshl_add_u32 v{vX+4}, v{vT+2}, 30, v{vX+4}"])
    su2.append([f"v_lshlrev_b32 v{vX+5}, 3, v{vT}", f"v_lshl_add_u32 v{vX+5}, v{vT+1}, 1, v{vX+5}",
                f"s_lshl_b32 s{sT3}, s{sNX}, 7", f"s_add_u32 s{sOUT}, s{sOUT}, s{sT3}"])

    def shift(vm, dit):
        return [f"{t[0]}{int(t[1:]) + dit*(16 if t[0] == 'L' else 2)}" for t in vm]
    def loop(name, first, last, evs):
        e(f"s_mov_b32 s{sIT}, {first}")
        entry = list(g.vm)
        g.label(f"L_{name}")
        body(first)
        assert g.vm == shift(entry, 1), (g.vm, entry)
        for it, lab in evs:
            assert first <= it <= last
            e(f"s_cmp_eq_u32 s{sIT}, {it}")
            e(f"s_cbranch_scc1 L_{lab}")
        g.label(f"L_{name}_back")
        if bar == 1:
            e("s_barrier")
        elif bar > 1:
            e(f"s_and_b32 s{sT0}, s{sIT}, {bar - 1}")
            e(f"s_cbranch_scc1 L_{name}_nb")
            e("s_barrier")
            g.label(f"L_{name}_nb")
        e(f"s_add_u32 s{sIT}, s{sIT}, 1")
        e(f"s_cmp_le_u32 s{sIT}, {last}")
        e(f"s_cbranch_scc1 L_{name}")
        g.vm = shift(entry, last - first + 1)

    g.c("---- K phase: one iteration consumes two tiles")
    loop("k", 0, 14, [])
    g.c("---- last K iteration (starts loading V); set-up for the second half rides along")
    body(15, [(su[:1], [0]), (su[1:2], [1]), (su[2:], [2]), (su2, [6, 8, 10, 14])])
    assert not any(t[0] == "X" for t in g.vm)
    if not t5 and not t3:
        stamp(2)
    S4 = P
    sc = []
    for i in range(8):
        qr = vQ + (i >> 1)
        grp = [f"v_and_b32 v{vT}, 0xffff0000, v{qr}" if i & 1 else f"v_lshlrev_b32 v{vT}, 16, v{qr}"]
        for r in range(4):
            grp.append(f"{'v_fmac_f32' if i else 'v_mul_f32'} v{S4+r}, v{vT}, v{vACC+i*4+r}")
        sc.append(grp)
    sc.append([f"v_readlane_b32 s{sTAG}, v{vT+5}, 0", f"v_readlane_b32 s{sTB}, v{vT+5}, s{sCI}"])
    sc2 = [[f"s_xor_b32 s{sTAG}, s{sTAG}, 0x5bd1e995"]]
    for sh in (8, 4, 2, 1):
        sc2.append([f"v_add_f32_dpp v{S4+r}, v{S4+r}, v{S4+r} row_ror:{sh} row_mask:0xf bank_mask:0xf" for r in range(4)])
    sc2.append([f"s_mov_b32 vcc_lo, 0x00020002", f"s_mov_b32 vcc_hi, 0x00020002",
                f"v_cndmask_b32 v{Y}, v{S4}, v{S4+2}, vcc", f"v_mov_b32 v{Y+1}, s{sTAG}",
                f"v_cndmask_b32 v{Y+2}, v{S4+1}, v{S4+3}, vcc", f"v_mov_b32 v{Y+3}, s{sTAG}"])
    sc2.append([f"s_mov_b32 exec_lo, 0x00030003", f"s_mov_b32 exec_hi, 0x00030003",
                f"buffer_store_dwordx4 {vr(Y,4)}, v{vX+2}, s[{SW}:{SW+3}], s{sSS} offen sc1",
                f"s_mov_b64 exec, -1"])
    g.c("---- first V iteration; computes and publishes the partial scores of this wave")
    zero_tiles.add(32)
    body(16, [(sc, [0, 2, 4, 6]), (sc2, [8, 10, 14])])

    def fetch(tag=None):
        for k in range(8 if w0 else 4):
            ins = f"buffer_load_dwordx2 {vr(Y+2*k,2)}, v{vX+4}, s[{SW}:{SW+3}], s{sOUT+(1,2,4,5)[k>>1]} offen offset:{(k&1)*2048} sc1"
            if tag:
                g.vmem(ins, tag)
            else:
                e(ins)
    fdr = {}
    def drain(n, m):
        e(f"s_cmp_eq_u32 s{sFIN}, 0")
        e(f"s_cbranch_scc1 L_fdrain{m & 15}")
        fdr[m & 15] = (n, m, list(g.vm))
        for x in range(n, m):
            if x & 1:
                g.wait({f"L{x}"})
                consume(x)
    def check(regs):
        e(f"v_xor_b32 v{vT}, s{sTAG}, v{regs[0]}")
        e(f"v_xor_b32 v{vT+1}, s{sTAG}, v{regs[1]}")
        for i, r in enumerate(regs[2:]):
            e(f"v_bitop3_b32 v{vT+(i&1)}, v{vT+(i&1)}, v{r}, s{sTAG} bitop3:0xf6   ; a | (b ^ c)")
        e(f"v_or_b32 v{vT}, v{vT}, v{vT+1}")
        e(f"v_cmp_ne_u32 vcc, 0, v{vT}")

    hs = 1 if hoist else 0
    lastplain = 17
    while ((lastplain + 1) * 16 + 15 + F + hs) >> 3 < DYN0 - 2:
        lastplain += 1
    assert dQ >= 1
    g.c("---- V phase")
    loop("v", 17, lastplain, [(lastplain - dQ, "evQ")])
    if t3:
        stamp(2)
        if cnt:
            e("s_waitcnt lgkmcnt(0)")
            e("s_sub_u32 s68, s68, s64")
    g.c("the scores of all 16 waves of this head were requested more than one window ago")
    g.label("L_chkQ")
    check([Y + 5, Y + 7, Y + 9, Y + 11])
    e(f"s_cbranch_vccnz L_retryQ")
    g.label("L_okQ")
    sm = []
    sm.append([f"v_add_f32_dpp v{P+r}, v{Y+4+2*r}, v{Y+4+2*r} row_ror:8 row_mask:0xf bank_mask:0xf" for r in range(4)])
    for sh in (4, 2, 1):
        sm.append([f"v_add_f32_dpp v{P+r}, v{P+r}, v{P+r} row_ror:{sh} row_mask:0xf bank_mask:0xf" for r in range(4)])
    sm.append([f"v_max3_f32 v{vT}, v{P}, v{P+1}, v{P+2}", f"v_max_f32 v{vT}, v{vT}, v{P+3}",
               f"v_mov_b32 v{vT+1}, v{vT}", "s_nop 1", f"v_permlane32_swap_b32 v{vT}, v{vT+1}",
               f"v_max_f32 v{vT}, v{vT}, v{vT+1}"])
    sm.append([f"v_mov_b32 v{vT+1}, v{vT}", "s_nop 1", f"v_permlane16_swap_b32 v{vT}, v{vT+1}",
               f"v_max_f32 v{vT}, v{vT}, v{vT+1}"])
    sm.append([f"v_sub_f32 v{P+r}, v{P+r}, v{vT}" for r in range(4)])
    sm.append([f"v_mul_f32 v{P+r}, s{sLE}, v{P+r}" for r in range(4)])
    sm.append([f"v_exp_f32 v{P+r}, v{P+r}" for r in range(4)] + ["s_nop 0"])
    sm.append([f"v_add_f32 v{vT}, v{P}, v{P+1}", f"v_add_f32 v{vT+1}, v{P+2}, v{P+3}", f"v_add_f32 v{vT}, v{vT}, v{vT+1}",
               f"v_mov_b32 v{vT+1}, v{vT}", "s_nop 1", f"v_permlane32_swap_b32 v{vT}, v{vT+1}",
               f"v_add_f32 v{vT}, v{vT}, v{vT+1}"])
    sm.append([f"v_mov_b32 v{vT+1}, v{vT}", "s_nop 1", f"v_permlane16_swap_b32 v{vT}, v{vT+1}",
               f"v_add_f32 v{vT}, v{vT}, v{vT+1}", f"v_rcp_f32 v{vT}, v{vT}", "s_nop 0"])
    sm.append([f"v_mul_f32 v{P+r}, v{P+r}, v{vT}" for r in range(4)])
    it = lastplain + 1
    g.c("softmax over the 16 scores (4 registers x 4 lane groups), spread over this iteration; first tickets")
    body(it, [(sm, [0, 2, 4, 6, 8, 10, 12, 14])])
    assert not drains
    it += 1
    g.c("---- tiles by ticket")
    while True:
        entry = list(g.vm)
        pos, nd = len(g.lines), len(drains)
        body(it)
        it += 1
        if g.vm == shift(entry, 1) and len(drains) == nd + 2:
            g.lines.insert(pos, "L_dyn:")
            break
    e(f"s_branch L_dyn")
    seen = {}
    for lab, n, m, vm in drains:
        g.vm = list(vm)
        start = len(g.lines)
        drain(n, m)
        code = g.lines[start:]
        del g.lines[start:]
        seen.setdefault("\n".join(code), []).append(lab)
    t = vB
    def row_epilogue():
        e(f"v_mov_b32 v{Y+17}, s{sTAG}")
        for i in range(8):
            a = vACC + i * 4
            e(f"v_mul_f32 v{t+i}, v{P}, v{a}")
            e(f"v_fmac_f32 v{t+i}, v{P+1}, v{a+1}")
            e(f"v_fmac_f32 v{t+i}, v{P+2}, v{a+2}")
            e(f"v_fmac_f32 v{t+i}, v{P+3}, v{a+3}")
        e(f"v_mov_b32 v{Y+19}, s{sTAG}")
        e(f"s_mov_b32 s{sCNT}, 0")
        for m in range(4):
            e(f"v_permlane32_swap_b32 v{t+m}, v{t+m+4}")
        for m in range(4):
            e(f"v_add_f32 v{t+m}, v{t+m}, v{t+m+4}")
        e("s_nop 1")
        for m in range(2):
            e(f"v_permlane16_swap_b32 v{t+m}, v{t+m+2}")
        for m in range(2):
            e(f"v_add_f32 v{Y+16+2*m}, v{t+m}, v{t+m+2}")
        stamp(1)
    def tile_addr(idx):
        return ((idx & 3) << 14) | (((idx >> 2) & 3) << 20) | (((idx >> 4) + PC0) << 16)
    g.c("---- no tile left, finishing workgroup: it goes on with its 64 columns of the kept-back rows")
    assert LQ % 2 == 0
    for par, (n0, m, vm) in fdr.items():
        g.vm = list(vm)
        g.label(f"L_fdrain{par}")
        e(f"s_lshl_b32 s{sCO}, s3, {15 if sep else 14}")
        e(f"s_xor_b32 s{sCO}, s{sCO}, s{sVB}")
        r0 = vR + ((m - 16) % NR) * 4
        r1_ = vR + ((m - 8) % NR) * 4
        bases = [vC, vC + 16, r0, r0 + 16, r1_, r1_ + 16]
        afr = [vCA, vCA + 4, vCA + 8, vCA + 12, vA, vA + 4]
        st = dict(y=0, lim=16)
        def col_issue(cnt):
            while cnt > 0 and st["y"] < min(8 * RC, st["lim"]):
                y = st["y"]
                j, k = y >> 3, y & 7
                if k == 0:
                    e(f"s_xor_b32 s{sOFF}, s{sCO}, {hex(((PC0 - 1) << 16 | 1 << 14 | j << 20) if sep else tile_addr(LQ + 2*j))}")
                    e(f"s_bfe_u32 s{sEOFF}, s{sOFF}, 0xe0008")
                    g.vmem(f"buffer_load_dwordx4 {vr(afr[j],4)}, v{vEF}, s[{SF}:{SF+3}], s{sEOFF} offen", f"B{j}")
                g.vmem(f"buffer_load_dwordx2 {vr(bases[j]+2*k,2)}, v{vKC}, s[{SV}:{SV+3}], s{sOFF} offen offset:{k*512}{polf}", f"C{y}")
                st["y"] += 1
                cnt -= 1
        acc_r = 0
        for x in range(n0, m):
            g.wait({f"L{x}"})
            acc_r += r1
            col_issue(int(acc_r) - st["y"])
            consume(x)
            if x == m - 9:
                st["lim"] = 32
        st["lim"] = 48
        col_issue(W2 - st["y"])
        row_epilogue()
        g.vmem(f"buffer_store_dwordx4 {vr(Y+16,4)}, v{vX+3}, s[{SW}:{SW+3}], s{sWSL} offen sc1", "S")
        bb = vB + 16
        fetched = False
        for y in range(1, 8 * RC, 2):
            j, q = y >> 3, (y >> 1) & 3
            if not fetched and y >= 8 * RC - fpos and st["y"] == 8 * RC:
                fetch("Y")
                fetched = True
            g.wait({f"C{y}"})
            col_issue(y + 1 + W2 - st["y"])
            for i in range(4):
                sel = sHI if (i & 1) else sLO
                e(f"v_perm_b32 v{bb+i*4+q}, v{bases[j]+4*q+2+(i>>1)}, v{bases[j]+4*q+(i>>1)}, s{sel}")
            if q == 3:
                for i in range(4):
                    e(f"v_mfma_f32_16x16x32_bf16 {vr(vCC+4*i,4)}, {vr(afr[j],4)}, {vr(bb+i*4,4)}, {'0' if j == 0 else vr(vCC+4*i,4)}")
        assert fetched
        e("s_branch L_col")
    g.c("---- no tile left: consume what is in flight, publish the partial")
    keys = list(seen)
    for i, key in enumerate(keys):
        for lab in seen[key]:
            g.label(lab)
        g.lines.append(key)
        if i + 1 < len(keys):
            e("s_branch L_epi")
    g.label("L_epi")
    row_epilogue()
    e(f"buffer_store_dwordx4 {vr(Y+16,4)}, v{vX+3}, s[{SW}:{SW+3}], s{sWSL} offen sc1")
    e(f"s_branch L_exit" if stamps else "s_endpgm")
    g.label("L_col")
    if not t3:
        stamp(2)
    e(f"v_and_b32 v{t+9}, 63, v0")
    e(f"v_lshlrev_b32 v{t+9}, 2, v{t+9}")
    e("s_nop 2")
    for i in range(4):
        a = vCC + i * 4
        e(f"v_mul_f32 v{t+i}, v{P}, v{a}")
        e(f"v_fmac_f32 v{t+i}, v{P+1}, v{a+1}")
        e(f"v_fmac_f32 v{t+i}, v{P+2}, v{a+2}")
        e(f"v_fmac_f32 v{t+i}, v{P+3}, v{a+3}")
    e("s_nop 1")
    for m in range(2):
        e(f"v_permlane32_swap_b32 v{t+m}, v{t+m+2}")
    for m in range(2):
        e(f"v_add_f32 v{t+m}, v{t+m}, v{t+m+2}")
    e("s_nop 1")
    e(f"v_permlane16_swap_b32 v{t}, v{t+1}")
    e(f"v_add_f32 v{t}, v{t}, v{t+1}")
    if w0:
        e(f"s_cmp_eq_u32 s3, 0")
        e(f"s_cbranch_scc1 L_w0")
        e(f"ds_write_b32 v{t+9}, v{t}")
        e(f"s_waitcnt lgkmcnt(0)")
        e(f"s_barrier")
        e(f"s_branch L_exit" if stamps else "s_endpgm")
        g.label("L_w0")
        e(f"s_barrier")
        e(f"ds_read_b32 v{t+1}, v{t+9}")
        e(f"s_branch L_look")
        g.label("L_again")
        fetch()
        g.label("L_look")
        e(f"s_add_u32 s{sCNT}, s{sCNT}, 1")
        e(f"s_cmp_ge_u32 s{sCNT}, {hex(SPIN)}")
        e(f"s_waitcnt vmcnt(0)")
        check([Y + 1 + 2 * k for k in range(8)])
        e(f"s_cbranch_scc1 L_fin")
        e(f"s_cbranch_vccnz L_again")
        g.label("L_fin")
        for k in range(0, 8, 2):
            e(f"v_add_f32 v{Y+2*k}, v{Y+2*k}, v{Y+2*k+2}")
        e(f"s_waitcnt lgkmcnt(0)")
        e(f"v_add_f32 v{t}, v{t}, v{t+1}")
        e(f"v_add_f32 v{Y}, v{Y}, v{Y+4}")
        e(f"v_add_f32 v{Y+8}, v{Y+8}, v{Y+12}")
        e(f"v_add_f32 v{t}, v{t}, v{Y}")
        e(f"v_add_f32 v{t}, v{t}, v{Y+8}")
        e(f"v_cvt_pk_bf16_f32 v{t}, v{t}, v{t}")
        e(f"buffer_store_short v{t}, v{vX+5}, s[{SO}:{SO+3}], s{sOUT} offen")
    else:
        e(f"s_branch L_look")
        g.label("L_again")
        fetch()
        g.label("L_look")
        e(f"s_add_u32 s{sCNT}, s{sCNT}, 1")
        e(f"s_cmp_ge_u32 s{sCNT}, {hex(SPIN)}")
        e(f"s_waitcnt vmcnt(0)")
        check([Y + 1, Y + 3, Y + 5, Y + 7])
        e(f"s_cbranch_scc1 L_fin")
        e(f"s_cbranch_vccnz L_again")
        g.label("L_fin")
        e(f"v_add_f32 v{Y}, v{Y}, v{Y+2}")
        e(f"v_add_f32 v{Y+4}, v{Y+4}, v{Y+6}")
        e(f"v_add_f32 v{t}, v{t}, v{Y}")
        e(f"s_cmp_eq_u32 s3, 0")
        e(f"v_add_f32 v{t}, v{t}, v{Y+4}")
        e(f"s_cbranch_scc1 L_w0")
        e(f"ds_write_b32 v{t+9}, v{t}")
        e(f"s_waitcnt lgkmcnt(0)")
        e(f"s_barrier")
        e(f"s_branch L_exit" if stamps else "s_endpgm")
        g.label("L_w0")
        e(f"s_barrier")
        e(f"ds_read_b32 v{t+1}, v{t+9}")
        e(f"s_waitcnt lgkmcnt(0)")
        e(f"v_add_f32 v{t}, v{t}, v{t+1}")
        e(f"v_cvt_pk_bf16_f32 v{t}, v{t}, v{t}")
        e(f"buffer_store_short v{t}, v{vX+5}, s[{SO}:{SO+3}], s{sOUT} offen")
    g.label("L_exit")
    if stamps:
        e("s_waitcnt vmcnt(0)")
        e("s_memrealtime s[70:71]")
        e("s_waitcnt lgkmcnt(0)")
        e("s_mov_b64 exec, 1")
        for i in range(4):
            e(f"v_mov_b32 v{8+i}, s{64+2*i}")
        e(f"s_lshl_b32 s56, s2, 5")
        e(f"s_lshl_b32 s57, s3, 4")
        e(f"s_add_u32 s56, s56, s57")
        e(f"s_add_u32 s56, s56, {1<<20}")
        e(f"buffer_store_dwordx4 v[8:11], off, s[{SW}:{SW+3}], s56")
    g.label("L_end")
    e("s_endpgm")

    def emitQ():
        e(f"buffer_load_dwordx4 {vr(Y+4,4)}, v{vX+1}, s[{SW}:{SW+3}], s{sSB} offen sc1")
        e(f"buffer_load_dwordx4 {vr(Y+8,4)}, v{vX+1}, s[{SW}:{SW+3}], s{sSB} offen offset:16 sc1")
    g.c("---- out of line: fetch the partial scores of the head (not counted: waits only get stricter)")
    g.label("L_evQ")
    emitQ()
    e(f"s_mov_b32 s{sCNT}, 0")
    e(f"s_branch L_v_back")
    g.label("L_retryQ")
    emitQ()
    e(f"s_add_u32 s{sCNT}, s{sCNT}, 1")
    e(f"s_cmp_lt_u32 s{sCNT}, {hex(SPIN)}")
    e(f"s_waitcnt vmcnt(0)")
    e(f"s_cbranch_scc1 L_chkQ")
    g.label("L_last")
    e(f"s_branch L_okQ")

    out = HEADER
    out += f"; @launch grid=(256,1,1) block=(128,1,1) lds=256\n"
    out += DOC
    out += f""".amdgcn_target "amdgcn-amd-amdhsa--gfx950"
.text
.globl {NAME}
.p2align 8
.type {NAME},@function
{NAME}:
"""
    out += g.text()
    out += f""".section .rodata,"a"
.p2align 6
.amdhsa_kernel {NAME}
  .amdhsa_next_free_vgpr {NV}
  .amdhsa_next_free_sgpr 96
  .amdhsa_accum_offset {NV}
  .amdhsa_group_segment_fixed_size 0
  .amdhsa_kernarg_size 64
  .amdhsa_user_sgpr_count 2
  .amdhsa_user_sgpr_kernarg_segment_ptr 1
  .amdhsa_system_sgpr_workgroup_id_x 1
  .amdhsa_float_denorm_mode_32 3
.end_amdhsa_kernel
"""
    return out

if __name__ == "__main__":
    import ast
    kw = {}
    for a in sys.argv[2:]:
        k, v = a.split("=")
        try: kw[k] = ast.literal_eval(v)
        except Exception: kw[k] = v
    open(sys.argv[1], "w").write(gen(**kw))
```

```python
import sys
from gen import G, vr, HEADER, NAME

DOC = """;
;
; A tile is 32 rows: 8 x buffer_load_dwordx4 (lane group g = rows 8g..8g+7, lane c = 16-byte column chunk), transposed
; Hand-offs go through d_ws as {value, tag} pairs (write-through stores, L1-bypassing loads).  The tag and the first
"""

def gen(F=11, pol="nt", stamps=False, dQ=2, aslot=6, ND=4, SPIN=0x200000, pre=6, R=2, hoist=True, track=True, cpf=1, tight=0, t5=False, nE=0, nO=0x0f0f, t3=False, dynn=False, nb=0, wide0=2, bar=0, RC=4, fpos=4, r1=2, W2=32, LF=None, npl=1, sep=False, w0=False, bfirst=False, cnt=False, vrot=True, grab2=False, X=None, after=False, lastq=False):
    g = G()
    e = g.e
    SK, SV, SE, SF, SQ, SO, SW = 4, 8, 12, 16, 20, 24, 32
    sTAG, sTB, sLE = 28, 29, 31
    sLO, sHI, sOFF, sEOFF = 36, 37, 38, 39
    sT0, sT1, sT2, sT3 = 56, 57, 58, 59
    sWSL, sHEAD, sCNT, sIT = 60, 61, 62, 63
    sKV0, sTC, sROT = 72, 73, 74
    sSB, sSS, sCT, sVB = 75, 76, 77, 78
    sOUT = 80
    sNX, sLM, sFIN = 88, 89, 90
    vKV, vEF = 1, 2
    vT = 4
    vX = 10
    vQ = 16
    vTK = 16
    P = 20
    vA = 24
    vACC = 32
    vB = 64
    vR = 96
    NR = 16
    Y = vR + NR * 4
    vC = Y + 28
    vCA = vC + 32
    vCC = vCA + 16
    NV = vCC + 16
    vKC = 3
    sPO, sCI = 93, 83
    sR3, sKB, sSK = 84, 85, 86
    sCO = 92
    R = 2 * RC
    assert 2 <= RC <= 6
    assert 9 <= F <= 14 and aslot >= F - 8 and ND % 2 == 0 and ND >= 2 and (nE & ~nO) == 0
    sXC = 91
    ncond = [0]
    NSV = 32 - ND
    LQ = 8 * ND - R
    PC0 = NSV // 2
    if sep:
        assert RC == 4
        LQ = 8 * ND
        NSV -= 1
    SC0, CT0 = 0x80000, 0x90000
    polf = " " + pol if pol else ""

    def stamp(idx):
        if stamps:
            e(f"s_memrealtime s[{64+2*idx}:{65+2*idx}]")

    def emit_cpf():
        g.c("pull the kernel's own code into L2 (four 128-byte lines per wave); the value is not used")
        e(f"s_getpc_b64 s[94:95]")
        g.label("L_pc")
        e(f"s_lshr_b32 s{sT1}, s2, 3")
        e(f"s_mul_i32 s{sT1}, s{sT1}, 3")
        e(f"v_add_lshl_u32 v{Y+24}, v0, s{sT1}, 7")
        e(f"v_min_u32 v{Y+24}, L_last - L_pc, v{Y+24}")
        e(f"v_mov_b32 v{Y+25}, 0")
        e(f"v_lshl_add_u64 {vr(Y+24,2)}, {vr(Y+24,2)}, 0, s[94:95]")
        e(f"s_mov_b64 exec, 15")
        e(f"global_load_dword v{Y+26}, {vr(Y+24,2)}, off")
        e(f"s_mov_b64 exec, -1")
    def emit_e():
        e(f"v_and_b32 v{vT}, 15, v0                ; c")
        e(f"v_bfe_u32 v{vT+1}, v0, 4, 2            ; g")
        e(f"v_lshlrev_b32 v{vEF}, 4, v{vT+1}")
        e(f"v_lshl_add_u32 v{vEF}, v{vT}, 14, v{vEF}     ; c*16384 + g*16")
        e(f"s_mov_b64 s[{SE}:{SE+1}], s[46:47]")
        e(f"s_mov_b32 s{SE+2}, 0x40000")
        e(f"s_mov_b32 s{SE+3}, 0x20000")
        e(f"s_mov_b32 s{sTC}, 0")
        e(f"s_mov_b32 s{sKV0}, s{sOFF}")
        e(f"s_bfe_u32 s{sEOFF}, s{sOFF}, 0xe0008")
    if tight:
        e(f"s_load_dwordx16 s[40:55], s[0:1], 0")
        e(f"s_lshr_b32 s{sT0}, s2, 8")
        e(f"s_cbranch_scc1 L_end")
        stamp(0)
        if tight == 1:
            emit_cpf()
        g.c("lane offset: c*16 + h*256 + g*4096")
        e(f"v_lshlrev_b32 v{vX}, 4, v0             ; c*16 + g*256 + h*1024")
        e(f"v_lshrrev_b32 v{vT+2}, 6, v0           ; h")
        e(f"v_and_b32 v{vKV}, 0x300, v{vX}")
        e(f"v_and_b32 v{vX}, 0xf0, v{vX}")
        e(f"v_lshl_add_u32 v{vX}, v{vT+2}, 8, v{vX}      ; h*256 + c*16")
        e(f"v_lshl_add_u32 v{vKV}, v{vKV}, 4, v{vX}")
        e(f"s_brev_b32 s{SK+2}, 16                  ; 0x8000000")
        e(f"s_mov_b32 s{SK+3}, 0x20000")
        g.c("byte offset of a tile: bit 15 = slice bit 0, bits 20..21 = slice bits 1..2, bits 22.. = head,")
        g.c("bits 14, 16..19 = tile number (bits 16..19 XORed with the head: heads walk their tiles in different orders)")
        e(f"s_lshr_b32 s{sOFF}, s2, 1")
        e(f"s_lshl_b32 s{sOFF}, s{sOFF}, 20")
        e(f"s_and_b32 s{sT0}, s2, 1")
        e(f"s_lshl_b32 s{sT0}, s{sT0}, 15")
        e(f"s_or_b32 s{sOFF}, s{sOFF}, s{sT0}")
        e(f"s_and_b32 s{sROT}, s2, 0x78")
        e(f"s_lshl_b32 s{sROT}, s{sROT}, 13")
        e(f"s_or_b32 s{sOFF}, s{sOFF}, s{sROT}")
        e(f"s_waitcnt lgkmcnt(0)")
        e(f"s_mov_b64 s[{SK}:{SK+1}], s[42:43]")
    else:
        e(f"s_load_dwordx16 s[40:55], s[0:1], 0")
        e(f"s_cmp_ge_u32 s2, 256")
        e(f"s_cbranch_scc1 L_end")
        stamp(0)
        if cpf:
            g.c("pull the kernel's own code into L2 (four 128-byte lines per wave); the value is not used")
            e(f"s_getpc_b64 s[94:95]")
            g.label("L_pc")
            e(f"s_lshr_b32 s{sT0}, s2, 3")
            e(f"s_mul_i32 s{sT0}, s{sT0}, 4")
            e(f"v_add_lshl_u32 v{Y+24}, v0, s{sT0}, 7")
            e(f"v_min_u32 v{Y+24}, L_last - L_pc, v{Y+24}")
            e(f"v_mov_b32 v{Y+25}, 0")
            e(f"v_lshl_add_u64 {vr(Y+24,2)}, {vr(Y+24,2)}, 0, s[94:95]")
            e(f"s_mov_b64 exec, 15")
            e(f"global_load_dword v{Y+26}, {vr(Y+24,2)}, off")
            e(f"s_mov_b64 exec, -1")
        e(f"v_and_b32 v{vT}, 15, v0                ; c")
        e(f"v_bfe_u32 v{vT+1}, v0, 4, 2            ; g")
        e(f"v_lshrrev_b32 v{vT+2}, 6, v0           ; h")
        e(f"v_lshlrev_b32 v{vX}, 4, v{vT}")
        e(f"v_lshl_add_u32 v{vX}, v{vT+2}, 8, v{vX}      ; h*256 + c*16")
        e(f"v_lshl_add_u32 v{vKV}, v{vT+1}, 12, v{vX}    ; + g*4096")
        e(f"v_lshlrev_b32 v{vEF}, 4, v{vT+1}")
        e(f"v_lshl_add_u32 v{vEF}, v{vT}, 14, v{vEF}     ; c*16384 + g*16")
        e(f"s_mov_b32 s{SK+2}, 0x8000000")
        e(f"s_mov_b32 s{SK+3}, 0x20000")
        e(f"s_mov_b32 s{SE+2}, 0x40000")
        e(f"s_mov_b32 s{SE+3}, 0x20000")
        g.c("byte offset of a tile: bit 15 = slice bit 0, bits 20..21 = slice bits 1..2, bits 22.. = head,")
        g.c("bits 14, 16..19 = tile number (bits 16..19 XORed with the head: heads walk their tiles in different orders)")
        e(f"s_lshr_b32 s{sKV0}, s2, 1")
        e(f"s_lshl_b32 s{sKV0}, s{sKV0}, 20")
        e(f"s_and_b32 s{sT0}, s2, 1")
        e(f"s_lshl_b32 s{sT0}, s{sT0}, 15")
        e(f"s_or_b32 s{sKV0}, s{sKV0}, s{sT0}")
        e(f"s_bfe_u32 s{sROT}, s2, 0x40003")
        e(f"s_lshl_b32 s{sROT}, s{sROT}, 16")
        e(f"s_or_b32 s{sKV0}, s{sKV0}, s{sROT}")
        e(f"s_mov_b32 s{sTC}, 0")
        e(f"s_mov_b32 s{sOFF}, s{sKV0}")
        e(f"s_bfe_u32 s{sEOFF}, s{sOFF}, 0xe0008")
        e(f"s_waitcnt lgkmcnt(0)")
        e(f"s_mov_b64 s[{SK}:{SK+1}], s[42:43]")
        e(f"s_mov_b64 s[{SE}:{SE+1}], s[46:47]")

    DYN0 = 32 + NSV
    drains = []
    nsk = [0]
    def request(T, cnt_=1, may_skip=False):
        e(f"s_mov_b64 exec, 1")
        if may_skip:
            nsk[0] += 1
            e(f"s_cmp_ge_u32 s{sT2}, s{sSK}")
            e(f"s_cbranch_scc1 L_sk{nsk[0]}")
        e(f"v_mov_b32 v{vTK+(T&1)}, {cnt_}")
        g.vmem(f"buffer_atomic_add v{vTK+(T&1)}, off, s[{SW}:{SW+3}], s{sCT} sc0", f"R{T}")
        if may_skip:
            g.label(f"L_skb{nsk[0]}")
            skips.append((nsk[0], T & 1))
        e(f"s_mov_b64 exec, -1")
    skips = []

    def boundary(T, n):
        if T < DYN0:
            if vrot and T >= 32:
                assert ND == 4 and not sep
                if T == 32:
                    g.c("V: chunks 14, 15 are reserved for the tickets; the others are visited in a head-dependent order")
                    e(f"s_bfe_u32 s{sTC}, s2, 0x20003")
                    e(f"s_lshl_b32 s{sTC}, s{sTC}, 18")
                    e(f"s_xor_b32 s{sKB}, s{sKV0}, s{sROT}")
                    e(f"s_bfe_u32 s{sR3}, s2, 0x10005")
                    e(f"s_lshl_b32 s{sR3}, s{sR3}, 16")
                    e(f"s_or_b32 s{sKB}, s{sKB}, s{sR3}")
                    e(f"s_bfe_u32 s{sR3}, s2, 0x10006")
                    e(f"s_lshl_b32 s{sR3}, s{sR3}, 17")
                    e(f"s_or_b32 s{sR3}, s{sR3}, s{sKB}")
                else:
                    e(f"s_add_u32 s{sTC}, s{sTC}, {'0x4000' if T & 1 else '0xc000'}")
                if not (T & 1):
                    if T > 32:
                        e(f"s_cmp_eq_u32 s{sTC}, 0xe0000")
                        e(f"s_cselect_b32 s{sTC}, 0, s{sTC}")
                    e(f"s_cmp_ge_u32 s{sTC}, 0xc0000")
                    e(f"s_cselect_b32 s{sKV0}, s{sKB}, s{sR3}")
            elif T == 32:
                e(f"s_mov_b32 s{sTC}, 0")
            else:
                e(f"s_add_u32 s{sTC}, s{sTC}, {'0x4000' if T & 1 else '0xc000'}")
            e(f"s_xor_b32 s{sOFF}, s{sTC}, s{sKV0}")
        else:
            if grab2 and T == DYN0 + 1:
                e(f"s_add_u32 s{sT2}, s{sT2}, 1")
            else:
                g.wait({f"R{T}"})
                e(f"v_readfirstlane_b32 s{sT2}, v{vTK+(T&1)}")
                e(f"s_sub_u32 s{sT2}, s{sT2}, s{sTB}")
            e(f"s_mov_b32 s{sT0}, s{sT2}")
            if LF is None:
                e(f"s_cmp_ge_u32 s{sT0}, {LQ}")
            else:
                e(f"s_cmp_ge_u32 s{sT0}, s{sLM}")
            lab = f"L_drain{len(drains)}"
            drains.append((lab, n, T * 8, list(g.vm)))
            e(f"s_cbranch_scc1 {lab}")
            if cnt:
                e(f"s_add_u32 s68, s68, 0x10000000")
            if LF is not None:
                e(f"s_add_u32 s{sT0}, s{sT0}, s{sPO}")
            e(f"s_and_b32 s{sT1}, s{sT0}, 3")
            e(f"s_lshl_b32 s{sOFF}, s{sT1}, 14")
            e(f"s_bfe_u32 s{sT1}, s{sT0}, 0x20002")
            e(f"s_lshl_b32 s{sT1}, s{sT1}, 20")
            e(f"s_or_b32 s{sOFF}, s{sOFF}, s{sT1}")
            e(f"s_lshr_b32 s{sT0}, s{sT0}, 4")
            e(f"s_add_u32 s{sT0}, s{sT0}, {PC0}")
            e(f"s_lshl_b32 s{sT0}, s{sT0}, 16")
            e(f"s_or_b32 s{sOFF}, s{sOFF}, s{sT0}")
            e(f"s_xor_b32 s{sOFF}, s{sOFF}, s{sVB}")
        e(f"s_bfe_u32 s{sEOFF}, s{sOFF}, 0xe0008")
        if T + 2 == DYN0:
            request(T + 2, 2 if grab2 else 1)
        elif T + 2 == DYN0 + 1:
            if not grab2:
                request(T + 2)
        elif T + 2 > DYN0:
            request(T + 2, 1, bool(X))

    def issue(m, n=None):
        T, k = m >> 3, m & 7
        ph = int(T >= 32)
        if k == 0 and m > 0 and not hoist:
            boundary(T, n)
        if k == aslot:
            srd = SF if ph else SE
            g.vmem(f"buffer_load_dwordx4 {vr(vA+(T&1)*4,4)}, v{vEF}, s[{srd}:{srd+3}], s{sEOFF} offen", f"A{T}")
        srd = SV if ph else SK
        r = vR + (m % NR) * 4
        g.vmem(f"buffer_load_dwordx4 {vr(r,4)}, v{vKV}, s[{srd}:{srd+3}], s{sOFF} offen offset:{k*512}{polf}", f"L{m}")
        if k == 7 and hoist:
            boundary(T + 1, n)

    zero_tiles = set()
    def consume(n):
        if not (n & 1):
            return
        T, q = n >> 3, (n >> 1) & 3
        x0 = vR + ((n - 1) % NR) * 4
        x1 = vR + (n % NR) * 4
        def perm(i):
            sel = sHI if (i & 1) else sLO
            e(f"v_perm_b32 v{vB+i*4+q}, v{x1+(i>>1)}, v{x0+(i>>1)}, s{sel}")
        def mfma(i):
            acc = vACC + i * 4
            cin = "0" if T in zero_tiles else vr(acc, 4)
            e(f"v_mfma_f32_16x16x32_bf16 {vr(acc,4)}, {vr(vA+(T&1)*4,4)}, {vr(vB+i*4,4)}, {cin}")
        if q != 3:
            for i in range(8):
                perm(i)
            return
        perm(0); perm(1); perm(2)
        for i in range(8):
            mfma(i)
            if i + 3 < 8:
                perm(i + 3)

    def body(it, fills=()):
        st = [[list(gr), sl, sum(map(len, gr)), 0] for gr, sl in fills]
        for n in range(it * 16, it * 16 + 16):
            k = n & 15
            use = dynn or ((n + F) >> 3) < DYN0 - wide0
            save = list(g.vm)
            x = nb if use else 0
            if use and (nO >> k & 1):
                if not (nE >> k & 1):
                    ncond[0] += 1
                    e(f"s_bitcmp0_b32 s{sXC}, 0")
                    if not bfirst:
                        g.wait({f"L{n+x}"})
                    e(f"s_cbranch_scc1 L_w{ncond[0]}")
                g.wait({f"L{n+x+1}"})
                if not (nE >> k & 1):
                    g.label(f"L_w{ncond[0]}")
                    if bfirst:
                        g.vm = list(save)
                        g.wait({f"L{n+x}"})
            else:
                g.wait({f"L{n+x}"})
            g.vm = save[save.index(f"L{n}") + 1:]
            issue(n + F, n)
            consume(n)
            for f in st:
                if (n & 15) in f[1]:
                    want = f[2] * (f[1].index(n & 15) + 1) / len(f[1])
                    while f[0] and f[3] < want:
                        grp = f[0].pop(0)
                        f[3] += len(grp)
                        for ins in grp:
                            if ins.startswith("buffer_load") and track:
                                g.vmem(ins, "X0")
                            else:
                                e(ins)
        assert not any(f[0] for f in st)

    for n in range(F):
        if tight and n == aslot:
            emit_e()
        issue(n)
    if t5:
        stamp(2)
    if tight == 2:
        emit_cpf()
    if nO != nE:
        e(f"s_getreg_b32 s{sXC}, hwreg(HW_REG_XCC_ID)")
    e(f"s_mov_b32 s{sLO}, 0x05040100")
    e(f"s_mov_b32 s{sHI}, 0x07060302")
    for r in range(0, 32, 2):
        e(f"v_mov_b64 {vr(vACC+r,2)}, 0")

    su = []
    su.append([f"v_readfirstlane_b32 s3, v{vT+2}",
               f"s_mov_b64 s[{SV}:{SV+1}], s[44:45]", f"s_mov_b32 s{SV+2}, 0x8000000", f"s_mov_b32 s{SV+3}, 0x20000",
               f"s_mov_b64 s[{SQ}:{SQ+1}], s[40:41]", f"s_mov_b32 s{SQ+2}, 0x4000", f"s_mov_b32 s{SQ+3}, 0x20000",
               f"s_lshr_b32 s{sHEAD}, s2, 3", f"s_lshl_b32 s{sOUT}, s{sHEAD}, 9",
               f"buffer_load_dwordx4 {vr(vQ,4)}, v{vX}, s[{SQ}:{SQ+3}], s{sOUT} offen"])
    su.append([f"s_mov_b64 s[{SW}:{SW+1}], s[54:55]", f"s_mov_b32 s{SW+2}, 0x20000000", f"s_mov_b32 s{SW+3}, 0x20000",
               f"s_lshl_b32 s{sT2}, s{sHEAD}, 10", f"s_add_u32 s{sT2}, s{sT2}, {hex(CT0)}",
               f"v_and_b32 v{vT+3}, 3, v0", f"v_lshlrev_b32 v{vT+3}, 8, v{vT+3}", f"s_mov_b64 exec, {5 if LF is None else 15}",
               f"buffer_load_dword v{vT+5}, v{vT+3}, s[{SW}:{SW+3}], s{sT2} offen sc1",
               f"s_mov_b64 exec, -1"])
    su.append([f"s_mov_b64 s[{SF}:{SF+1}], s[48:49]", f"s_mov_b32 s{SF+2}, 0x40000", f"s_mov_b32 s{SF+3}, 0x20000",
               f"s_lshr_b32 s{sT3}, s2, 1", f"s_xor_b32 s{sT3}, s{sT3}, s{sHEAD}",
               f"s_and_b32 s{sFIN}, s{sT3}, 1              ; 0: this workgroup finishes 64 columns",
               f"s_lshl_b32 s{sCI}, s3, 1"] + ([] if LF is None else [f"s_or_b32 s{sCI}, s{sCI}, s{sFIN}"]) +
              [f"s_lshl_b32 s{sT3}, s{sCI}, 8", f"s_add_u32 s{sCT}, s{sT2}, s{sT3}         ; counter of this wave's pool"])
    su2 = []
    su2.append([f"s_mov_b64 s[{SO}:{SO+1}], s[50:51]", f"s_mov_b32 s{SO+2}, 0x4000", f"s_mov_b32 s{SO+3}, 0x20000",
                f"s_mov_b32 s{sLE}, 0x3db8aa3b          ; log2(e)/16"])
    su2.append([f"s_lshl_b32 s{sVB}, s{sHEAD}, 22"] + ([] if vrot else [f"s_or_b32 s{sVB}, s{sVB}, s{sROT}"]))
    if X:
        assert LF is None
        su2.append([f"s_xor_b32 s{sT3}, s{sHEAD}, s2", f"s_and_b32 s{sT3}, s{sT3}, 5", f"s_xor_b32 s{sSK}, s{sFIN}, 1",
                    f"s_or_b32 s{sT3}, s{sT3}, s{sSK}", f"s_cmp_eq_u32 s{sT3}, 0",
                    f"s_cselect_b32 s{sSK}, {LQ - 1}, {LQ - X}"])
    su2.append([f"s_lshl_b32 s{sWSL}, s2, 11",
                f"s_lshl_b32 s{sSS}, s2, 8", f"s_add_u32 s{sSS}, s{sSS}, {hex(SC0)}",
                f"s_lshl_b32 s{sSB}, s{sHEAD}, 11", f"s_add_u32 s{sSB}, s{sSB}, {hex(SC0)}"])
    su2.append([f"v_lshlrev_b32 v{vX+1}, 7, v{vT}",
                f"v_lshl_add_u32 v{vX+1}, v{vT+1}, 5, v{vX+1}"])
    su2.append([f"v_lshlrev_b32 v{vX+2}, 7, v{vT+2}", f"v_lshl_add_u32 v{vX+2}, v{vT+1}, 5, v{vX+2}",
                f"v_lshl_add_u32 v{vX+2}, v{vT}, 4, v{vX+2}"])
    su2.append([f"v_lshlrev_b32 v{vX+3}, 4, v0"])
    su2.append([f"s_bfe_u32 s{sNX}, s2, 0x10002", f"s_lshl_b32 s{sNX}, s{sNX}, 1", f"s_and_b32 s{sT3}, s2, 1",
                f"s_or_b32 s{sNX}, s{sNX}, s{sT3}"])
    if LF is not None:
        su2.append([f"s_cmp_eq_u32 s{sFIN}, 0", f"s_cselect_b32 s{sLM}, {LF}, {LQ - LF}", f"s_cselect_b32 s{sPO}, 0, {LF}"])
    su2.append([f"v_lshlrev_b32 v{vKC}, 3, v{vT}", f"v_lshl_add_u32 v{vKC}, v{vT+1}, 12, v{vKC}",
                f"s_lshl_b32 s{sT3}, s{sNX}, 7", f"v_add_u32 v{vKC}, s{sT3}, v{vKC}            ; g*4096 + group*128 + c*8"])
    su2.append([f"v_and_b32 v{vT+3}, 1, v{vT}", f"v_lshl_add_u32 v{vT+3}, v{vT+3}, 2, v{vT+1}    ; 4*(c&1) + g",
                f"v_lshrrev_b32 v{vT+4}, 1, v{vT+3}", f"v_lshlrev_b32 v{vX+4}, 8, v{vT+4}",
                f"v_and_b32 v{vT+3}, 1, v{vT+3}", f"v_lshl_add_u32 v{vX+4}, v{vT+3}, 3, v{vX+4}",
                f"v_lshrrev_b32 v{vT+4}, 1, v{vT}", f"v_lshl_add_u32 v{vX+4}, v{vT+4}, 4, v{vX+4}"])
    su2.append([f"s_lshl_b32 s{sOUT+1}, s{sHEAD}, 14"] + ([] if w0 else [f"s_lshl_b32 s{sT3}, s3, 13", f"s_add_u32 s{sOUT+1}, s{sOUT+1}, s{sT3}"]) + [
                f"s_lshr_b32 s{sT3}, s{sNX}, 1", f"s_lshl_b32 s{sT3}, s{sT3}, 10", f"s_add_u32 s{sOUT+1}, s{sOUT+1}, s{sT3}",
                f"s_and_b32 s{sT3}, s{sNX}, 1", f"s_lshl_b32 s{sT3}, s{sT3}, 7",
                f"s_add_u32 s{sOUT+1}, s{sOUT+1}, s{sT3}     ; wave h reads the slots of slices 4h..4h+3",
                f"s_add_u32 s{sOUT+2}, s{sOUT+1}, 0x1000"])
    if w0:
        su2.append([f"s_add_u32 s{sOUT+4}, s{sOUT+1}, 0x2000", f"s_add_u32 s{sOUT+5}, s{sOUT+1}, 0x3000"])
    if w0:
        su2.append([f"v_lshl_add_u32 v{vX+4}, v{vT+2}, 30, v{vX+4}"])
    su2.append([f"v_lshlrev_b32 v{vX+5}, 3, v{vT}", f"v_lshl_add_u32 v{vX+5}, v{vT+1}, 1, v{vX+5}",
                f"s_lshl_b32 s{sT3}, s{sNX}, 7", f"s_add_u32 s{sOUT}, s{sOUT}, s{sT3}"])

    def shift(vm, dit):
        return [f"{t[0]}{int(t[1:]) + dit*(16 if t[0] == 'L' else 2)}" for t in vm]
    def loop(name, first, last, evs):
        e(f"s_mov_b32 s{sIT}, {first}")
        entry = list(g.vm)
        g.label(f"L_{name}")
        body(first)
        assert g.vm == shift(entry, 1), (g.vm, entry)
        for it, lab in evs:
            assert first <= it <= last
            e(f"s_cmp_eq_u32 s{sIT}, {it}")
            e(f"s_cbranch_scc1 L_{lab}")
        g.label(f"L_{name}_back")
        if bar == 1:
            e("s_barrier")
        elif bar > 1:
            e(f"s_and_b32 s{sT0}, s{sIT}, {bar - 1}")
            e(f"s_cbranch_scc1 L_{name}_nb")
            e("s_barrier")
            g.label(f"L_{name}_nb")
        e(f"s_add_u32 s{sIT}, s{sIT}, 1")
        e(f"s_cmp_le_u32 s{sIT}, {last}")
        e(f"s_cbranch_scc1 L_{name}")
        g.vm = shift(entry, last - first + 1)

    g.c("---- K phase: one iteration consumes two tiles")
    loop("k", 0, 14, [])
    g.c("---- last K iteration (starts loading V); set-up for the second half rides along")
    body(15, [(su[:1], [0]), (su[1:2], [1]), (su[2:], [2]), (su2, [6, 8, 10, 14])])
    assert not any(t[0] == "X" for t in g.vm)
    if not t5 and not t3:
        stamp(2)
    S4 = P
    sc = []
    for i in range(8):
        qr = vQ + (i >> 1)
        grp = [f"v_and_b32 v{vT}, 0xffff0000, v{qr}" if i & 1 else f"v_lshlrev_b32 v{vT}, 16, v{qr}"]
        for r in range(4):
            grp.append(f"{'v_fmac_f32' if i else 'v_mul_f32'} v{S4+r}, v{vT}, v{vACC+i*4+r}")
        sc.append(grp)
    sc.append([f"v_readlane_b32 s{sTAG}, v{vT+5}, 0", f"v_readlane_b32 s{sTB}, v{vT+5}, s{sCI}"])
    sc2 = [[f"s_xor_b32 s{sTAG}, s{sTAG}, 0x5bd1e995"]]
    for sh in (8, 4, 2, 1):
        sc2.append([f"v_add_f32_dpp v{S4+r}, v{S4+r}, v{S4+r} row_ror:{sh} row_mask:0xf bank_mask:0xf" for r in range(4)])
    sc2.append([f"s_mov_b32 vcc_lo, 0x00020002", f"s_mov_b32 vcc_hi, 0x00020002",
                f"v_cndmask_b32 v{Y}, v{S4}, v{S4+2}, vcc", f"v_mov_b32 v{Y+1}, s{sTAG}",
                f"v_cndmask_b32 v{Y+2}, v{S4+1}, v{S4+3}, vcc", f"v_mov_b32 v{Y+3}, s{sTAG}"])
    sc2.append([f"s_mov_b32 exec_lo, 0x00030003", f"s_mov_b32 exec_hi, 0x00030003",
                f"buffer_store_dwordx4 {vr(Y,4)}, v{vX+2}, s[{SW}:{SW+3}], s{sSS} offen sc1",
                f"s_mov_b64 exec, -1"])
    g.c("---- first V iteration; computes and publishes the partial scores of this wave")
    zero_tiles.add(32)
    body(16, [(sc, [0, 2, 4, 6]), (sc2, [8, 10, 14])])

    def fetch(tag=None):
        for k in range(8 if w0 else 4):
            ins = f"buffer_load_dwordx2 {vr(Y+2*k,2)}, v{vX+4}, s[{SW}:{SW+3}], s{sOUT+(1,2,4,5)[k>>1]} offen offset:{(k&1)*2048} sc1"
            if tag:
                g.vmem(ins, tag)
            else:
                e(ins)
    fdr = {}
    def drain(n, m):
        e(f"s_cmp_eq_u32 s{sFIN}, 0")
        g.vm = [t for t in g.vm if t[0] != "R"]
        e(f"s_cbranch_scc1 L_fdrain{m & 15}")
        fdr[m & 15] = (n, m, list(g.vm))
        for x in range(n, m):
            if x & 1:
                g.wait({f"L{x}"})
                consume(x)
    def check(regs):
        e(f"v_xor_b32 v{vT}, s{sTAG}, v{regs[0]}")
        e(f"v_xor_b32 v{vT+1}, s{sTAG}, v{regs[1]}")
        for i, r in enumerate(regs[2:]):
            e(f"v_bitop3_b32 v{vT+(i&1)}, v{vT+(i&1)}, v{r}, s{sTAG} bitop3:0xf6   ; a | (b ^ c)")
        e(f"v_or_b32 v{vT}, v{vT}, v{vT+1}")
        e(f"v_cmp_ne_u32 vcc, 0, v{vT}")

    hs = 1 if hoist else 0
    lastplain = 17
    while ((lastplain + 1) * 16 + 15 + F + hs) >> 3 < DYN0 - 2:
        lastplain += 1
    assert dQ >= 1
    g.c("---- V phase")
    loop("v", 17, lastplain, [(lastplain - dQ, "evQ")])
    if t3:
        stamp(2)
        if cnt:
            e("s_waitcnt lgkmcnt(0)")
            e("s_sub_u32 s68, s68, s64")
    g.c("the scores of all 16 waves of this head were requested more than one window ago")
    g.label("L_chkQ")
    check([Y + 5, Y + 7, Y + 9, Y + 11])
    e(f"s_cbranch_vccnz L_retryQ")
    g.label("L_okQ")
    sm = []
    sm.append([f"v_add_f32_dpp v{P+r}, v{Y+4+2*r}, v{Y+4+2*r} row_ror:8 row_mask:0xf bank_mask:0xf" for r in range(4)])
    for sh in (4, 2, 1):
        sm.append([f"v_add_f32_dpp v{P+r}, v{P+r}, v{P+r} row_ror:{sh} row_mask:0xf bank_mask:0xf" for r in range(4)])
    sm.append([f"v_max3_f32 v{vT}, v{P}, v{P+1}, v{P+2}", f"v_max_f32 v{vT}, v{vT}, v{P+3}",
               f"v_mov_b32 v{vT+1}, v{vT}", "s_nop 1", f"v_permlane32_swap_b32 v{vT}, v{vT+1}",
               f"v_max_f32 v{vT}, v{vT}, v{vT+1}"])
    sm.append([f"v_mov_b32 v{vT+1}, v{vT}", "s_nop 1", f"v_permlane16_swap_b32 v{vT}, v{vT+1}",
               f"v_max_f32 v{vT}, v{vT}, v{vT+1}"])
    sm.append([f"v_sub_f32 v{P+r}, v{P+r}, v{vT}" for r in range(4)])
    sm.append([f"v_mul_f32 v{P+r}, s{sLE}, v{P+r}" for r in range(4)])
    sm.append([f"v_exp_f32 v{P+r}, v{P+r}" for r in range(4)] + ["s_nop 0"])
    sm.append([f"v_add_f32 v{vT}, v{P}, v{P+1}", f"v_add_f32 v{vT+1}, v{P+2}, v{P+3}", f"v_add_f32 v{vT}, v{vT}, v{vT+1}",
               f"v_mov_b32 v{vT+1}, v{vT}", "s_nop 1", f"v_permlane32_swap_b32 v{vT}, v{vT+1}",
               f"v_add_f32 v{vT}, v{vT}, v{vT+1}"])
    sm.append([f"v_mov_b32 v{vT+1}, v{vT}", "s_nop 1", f"v_permlane16_swap_b32 v{vT}, v{vT+1}",
               f"v_add_f32 v{vT}, v{vT}, v{vT+1}", f"v_rcp_f32 v{vT}, v{vT}", "s_nop 0"])
    sm.append([f"v_mul_f32 v{P+r}, v{P+r}, v{vT}" for r in range(4)])
    it = lastplain + 1
    g.c("softmax over the 16 scores (4 registers x 4 lane groups), spread over this iteration; first tickets")
    body(it, [(sm, [0, 2, 4, 6, 8, 10, 12, 14])])
    assert not drains
    it += 1
    g.c("---- tiles by ticket")
    while True:
        entry = list(g.vm)
        pos, nd = len(g.lines), len(drains)
        body(it)
        it += 1
        if g.vm == shift(entry, 1) and len(drains) == nd + 2 and (nd >= 2 or not grab2):
            g.lines.insert(pos, "L_dyn:")
            break
    e(f"s_branch L_dyn")
    seen = {}
    for lab, n, m, vm in drains:
        g.vm = list(vm)
        start = len(g.lines)
        drain(n, m)
        code = g.lines[start:]
        del g.lines[start:]
        seen.setdefault("\n".join(code), []).append(lab)
    t = vB
    def row_epilogue():
        e(f"v_mov_b32 v{Y+17}, s{sTAG}")
        for i in range(8):
            a = vACC + i * 4
            e(f"v_mul_f32 v{t+i}, v{P}, v{a}")
            e(f"v_fmac_f32 v{t+i}, v{P+1}, v{a+1}")
            e(f"v_fmac_f32 v{t+i}, v{P+2}, v{a+2}")
            e(f"v_fmac_f32 v{t+i}, v{P+3}, v{a+3}")
        e(f"v_mov_b32 v{Y+19}, s{sTAG}")
        e(f"s_mov_b32 s{sCNT}, 0")
        for m in range(4):
            e(f"v_permlane32_swap_b32 v{t+m}, v{t+m+4}")
        for m in range(4):
            e(f"v_add_f32 v{t+m}, v{t+m}, v{t+m+4}")
        e("s_nop 1")
        for m in range(2):
            e(f"v_permlane16_swap_b32 v{t+m}, v{t+m+2}")
        for m in range(2):
            e(f"v_add_f32 v{Y+16+2*m}, v{t+m}, v{t+m+2}")
        stamp(1)
    def tile_addr(idx):
        return ((idx & 3) << 14) | (((idx >> 2) & 3) << 20) | (((idx >> 4) + PC0) << 16)
    g.c("---- no tile left, finishing workgroup: it goes on with its 64 columns of the kept-back rows")
    assert LQ % 2 == 0
    for par, (n0, m, vm) in fdr.items():
        g.vm = list(vm)
        g.label(f"L_fdrain{par}")
        e(f"s_lshl_b32 s{sCO}, s3, {15 if sep else 14}")
        e(f"s_xor_b32 s{sCO}, s{sCO}, s{sVB}")
        r0 = vR + ((m - 16) % NR) * 4
        r1_ = vR + ((m - 8) % NR) * 4
        bases = [vC, vC + 16, r0, r0 + 16, r1_, r1_ + 16]
        afr = [vCA, vCA + 4, vCA + 8, vCA + 12, vA, vA + 4]
        st = dict(y=0, lim=16)
        def col_issue(cnt):
            while cnt > 0 and st["y"] < min(8 * RC, st["lim"]):
                y = st["y"]
                j, k = y >> 3, y & 7
                if k == 0:
                    e(f"s_xor_b32 s{sOFF}, s{sCO}, {hex(((PC0 - 1) << 16 | 1 << 14 | j << 20) if sep else tile_addr(LQ + 2*j))}")
                    e(f"s_bfe_u32 s{sEOFF}, s{sOFF}, 0xe0008")
                    g.vmem(f"buffer_load_dwordx4 {vr(afr[j],4)}, v{vEF}, s[{SF}:{SF+3}], s{sEOFF} offen", f"B{j}")
                g.vmem(f"buffer_load_dwordx2 {vr(bases[j]+2*k,2)}, v{vKC}, s[{SV}:{SV+3}], s{sOFF} offen offset:{k*512}{polf}", f"C{y}")
                st["y"] += 1
                cnt -= 1
        acc_r = 0
        for x in range(n0, m):
            g.wait({f"L{x}"})
            acc_r += r1
            if not (lastq and x == m - 1):
                col_issue(int(acc_r) - st["y"])
            consume(x)
            if x == m - 9:
                st["lim"] = 32
        st["lim"] = 48
        if not after:
            col_issue(W2 - st["y"])
        row_epilogue()
        g.vmem(f"buffer_store_dwordx4 {vr(Y+16,4)}, v{vX+3}, s[{SW}:{SW+3}], s{sWSL} offen sc1", "S")
        if after:
            col_issue(W2 - st["y"])
        bb = vB + 16
        fetched = False
        for y in range(1, 8 * RC, 2):
            j, q = y >> 3, (y >> 1) & 3
            if not fetched and y >= 8 * RC - fpos and st["y"] == 8 * RC:
                fetch("Y")
                fetched = True
            g.wait({f"C{y}"})
            col_issue(y + 1 + W2 - st["y"])
            for i in range(4):
                sel = sHI if (i & 1) else sLO
                e(f"v_perm_b32 v{bb+i*4+q}, v{bases[j]+4*q+2+(i>>1)}, v{bases[j]+4*q+(i>>1)}, s{sel}")
            if q == 3:
                for i in range(4):
                    e(f"v_mfma_f32_16x16x32_bf16 {vr(vCC+4*i,4)}, {vr(afr[j],4)}, {vr(bb+i*4,4)}, {'0' if j == 0 else vr(vCC+4*i,4)}")
        assert fetched
        e("s_branch L_col")
    g.c("---- no tile left: consume what is in flight, publish the partial")
    keys = list(seen)
    for i, key in enumerate(keys):
        for lab in seen[key]:
            g.label(lab)
        g.lines.append(key)
        if i + 1 < len(keys):
            e("s_branch L_epi")
    g.label("L_epi")
    row_epilogue()
    e(f"buffer_store_dwordx4 {vr(Y+16,4)}, v{vX+3}, s[{SW}:{SW+3}], s{sWSL} offen sc1")
    e(f"s_branch L_exit" if stamps else "s_endpgm")
    g.label("L_col")
    if not t3:
        stamp(2)
    e(f"v_and_b32 v{t+9}, 63, v0")
    e(f"v_lshlrev_b32 v{t+9}, 2, v{t+9}")
    e("s_nop 2")
    for i in range(4):
        a = vCC + i * 4
        e(f"v_mul_f32 v{t+i}, v{P}, v{a}")
        e(f"v_fmac_f32 v{t+i}, v{P+1}, v{a+1}")
        e(f"v_fmac_f32 v{t+i}, v{P+2}, v{a+2}")
        e(f"v_fmac_f32 v{t+i}, v{P+3}, v{a+3}")
    e("s_nop 1")
    for m in range(2):
        e(f"v_permlane32_swap_b32 v{t+m}, v{t+m+2}")
    for m in range(2):
        e(f"v_add_f32 v{t+m}, v{t+m}, v{t+m+2}")
    e("s_nop 1")
    e(f"v_permlane16_swap_b32 v{t}, v{t+1}")
    e(f"v_add_f32 v{t}, v{t}, v{t+1}")
    if w0:
        e(f"s_cmp_eq_u32 s3, 0")
        e(f"s_cbranch_scc1 L_w0")
        e(f"ds_write_b32 v{t+9}, v{t}")
        e(f"s_waitcnt lgkmcnt(0)")
        e(f"s_barrier")
        e(f"s_branch L_exit" if stamps else "s_endpgm")
        g.label("L_w0")
        e(f"s_barrier")
        e(f"ds_read_b32 v{t+1}, v{t+9}")
        e(f"s_branch L_look")
        g.label("L_again")
        fetch()
        g.label("L_look")
        e(f"s_add_u32 s{sCNT}, s{sCNT}, 1")
        e(f"s_cmp_ge_u32 s{sCNT}, {hex(SPIN)}")
        e(f"s_waitcnt vmcnt(0)")
        check([Y + 1 + 2 * k for k in range(8)])
        e(f"s_cbranch_scc1 L_fin")
        e(f"s_cbranch_vccnz L_again")
        g.label("L_fin")
        for k in range(0, 8, 2):
            e(f"v_add_f32 v{Y+2*k}, v{Y+2*k}, v{Y+2*k+2}")
        e(f"s_waitcnt lgkmcnt(0)")
        e(f"v_add_f32 v{t}, v{t}, v{t+1}")
        e(f"v_add_f32 v{Y}, v{Y}, v{Y+4}")
        e(f"v_add_f32 v{Y+8}, v{Y+8}, v{Y+12}")
        e(f"v_add_f32 v{t}, v{t}, v{Y}")
        e(f"v_add_f32 v{t}, v{t}, v{Y+8}")
        e(f"v_cvt_pk_bf16_f32 v{t}, v{t}, v{t}")
        e(f"buffer_store_short v{t}, v{vX+5}, s[{SO}:{SO+3}], s{sOUT} offen")
    else:
        e(f"s_branch L_look")
        g.label("L_again")
        fetch()
        g.label("L_look")
        e(f"s_add_u32 s{sCNT}, s{sCNT}, 1")
        e(f"s_cmp_ge_u32 s{sCNT}, {hex(SPIN)}")
        e(f"s_waitcnt vmcnt(0)")
        check([Y + 1, Y + 3, Y + 5, Y + 7])
        e(f"s_cbranch_scc1 L_fin")
        e(f"s_cbranch_vccnz L_again")
        g.label("L_fin")
        e(f"v_add_f32 v{Y}, v{Y}, v{Y+2}")
        e(f"v_add_f32 v{Y+4}, v{Y+4}, v{Y+6}")
        e(f"v_add_f32 v{t}, v{t}, v{Y}")
        e(f"s_cmp_eq_u32 s3, 0")
        e(f"v_add_f32 v{t}, v{t}, v{Y+4}")
        e(f"s_cbranch_scc1 L_w0")
        e(f"ds_write_b32 v{t+9}, v{t}")
        e(f"s_waitcnt lgkmcnt(0)")
        e(f"s_barrier")
        e(f"s_branch L_exit" if stamps else "s_endpgm")
        g.label("L_w0")
        e(f"s_barrier")
        e(f"ds_read_b32 v{t+1}, v{t+9}")
        e(f"s_waitcnt lgkmcnt(0)")
        e(f"v_add_f32 v{t}, v{t}, v{t+1}")
        e(f"v_cvt_pk_bf16_f32 v{t}, v{t}, v{t}")
        e(f"buffer_store_short v{t}, v{vX+5}, s[{SO}:{SO+3}], s{sOUT} offen")
    g.label("L_exit")
    if stamps:
        e("s_waitcnt vmcnt(0)")
        e("s_memrealtime s[70:71]")
        e("s_waitcnt lgkmcnt(0)")
        e("s_mov_b64 exec, 1")
        for i in range(4):
            e(f"v_mov_b32 v{8+i}, s{64+2*i}")
        e(f"s_lshl_b32 s56, s2, 5")
        e(f"s_lshl_b32 s57, s3, 4")
        e(f"s_add_u32 s56, s56, s57")
        e(f"s_add_u32 s56, s56, {1<<20}")
        e(f"buffer_store_dwordx4 v[8:11], off, s[{SW}:{SW+3}], s56")
    g.label("L_end")
    e("s_endpgm")

    def emitQ():
        e(f"buffer_load_dwordx4 {vr(Y+4,4)}, v{vX+1}, s[{SW}:{SW+3}], s{sSB} offen sc1")
        e(f"buffer_load_dwordx4 {vr(Y+8,4)}, v{vX+1}, s[{SW}:{SW+3}], s{sSB} offen offset:16 sc1")
    g.c("---- out of line: fetch the partial scores of the head (not counted: waits only get stricter)")
    for k, par in skips:
        g.label(f"L_sk{k}")
        g.c("no further ticket: a plain load keeps the request count")
        e(f"s_add_u32 s{sT1}, s{sTB}, {LQ}")
        e(f"v_mov_b32 v{vTK+par}, s{sT1}")
        e(f"buffer_load_dword v{vTK+2}, off, s[{SQ}:{SQ+3}], 0")
        e(f"s_branch L_skb{k}")
    g.label("L_evQ")
    emitQ()
    e(f"s_mov_b32 s{sCNT}, 0")
    e(f"s_branch L_v_back")
    g.label("L_retryQ")
    emitQ()
    e(f"s_add_u32 s{sCNT}, s{sCNT}, 1")
    e(f"s_cmp_lt_u32 s{sCNT}, {hex(SPIN)}")
    e(f"s_waitcnt vmcnt(0)")
    e(f"s_cbranch_scc1 L_chkQ")
    g.label("L_last")
    e(f"s_branch L_okQ")

    out = HEADER
    out += f"; @launch grid=(256,1,1) block=(128,1,1) lds=256\n"
    out += DOC
    out += f""".amdgcn_target "amdgcn-amd-amdhsa--gfx950"
.text
.globl {NAME}
.p2align 8
.type {NAME},@function
{NAME}:
"""
    out += g.text()
    out += f""".section .rodata,"a"
.p2align 6
.amdhsa_kernel {NAME}
  .amdhsa_next_free_vgpr {NV}
  .amdhsa_next_free_sgpr 96
  .amdhsa_accum_offset {NV}
  .amdhsa_group_segment_fixed_size 0
  .amdhsa_kernarg_size 64
  .amdhsa_user_sgpr_count 2
  .amdhsa_user_sgpr_kernarg_segment_ptr 1
  .amdhsa_system_sgpr_workgroup_id_x 1
  .amdhsa_float_denorm_mode_32 3
.end_amdhsa_kernel
"""
    return out

if __name__ == "__main__":
    import ast
    kw = {}
    for a in sys.argv[2:]:
        k, v = a.split("=")
        try: kw[k] = ast.literal_eval(v)
        except Exception: kw[k] = v
    open(sys.argv[1], "w").write(gen(**kw))
```

```python
from batch3 import run
import gen15, gen16
C = []
def add(**kw):
    C.append((str(kw), kw))
def gen(which=16, **kw):
    return (gen15 if which == 15 else gen16).gen(**kw)
add()
add(after=True)
add(after=True, lastq=True)
add(after=True, r1=2.4, lastq=True)
add(r1=3, lastq=True)
add(after=True, RC=5, W2=40, r1=3, lastq=True)
add(after=True, fpos=8)
add(after=True, fpos=2)
run(C, gen, ev=True)
```
